```python
import torch

def _softmax(x, axis=-1):
    return torch.softmax(x, dim=axis)
def _gelu(x):
    return torch.nn.functional.gelu(x, approximate="tanh")
def _silu(x):
    return torch.nn.functional.silu(x)
def _sigmoid(x):
    return torch.sigmoid(x)
def _layernorm(x, axis=-1, eps=1e-5):
    m = x.mean(dim=axis, keepdim=True)
    v = x.var(dim=axis, keepdim=True, unbiased=False)
    return (x - m) / torch.sqrt(v + eps)
def _scatter_add(tgt, idx, src, axis=0):
    return tgt.clone().index_add_(axis, idx, src)
def _segment_sum(src, seg, n):
    out = torch.zeros((n,) + src.shape[1:], dtype=src.dtype)
    return out.index_add_(0, seg, src)
def _pad(x, pw):
    flat = tuple(v for pair in reversed(pw) for v in pair)
    return torch.nn.functional.pad(x, flat)

kernel_name = 'gated_mix__grouped_kv_mqa__glu_gated_geglu__prompt'

def setup_inputs():

    _w = (lambda a: (lambda t: t.to(torch.bfloat16) if t.is_floating_point() else t)(torch.as_tensor(a)))
    def _A_setup():
        B, S, D, H = 1, 2048, 640, 32
        Dh = D // H
        return {
            "x": _w((lambda *s: torch.randn(*s, dtype=torch.bfloat16) * 0.05)(B, S, D)),
            "wq": _w((lambda *s: torch.randn(*s, dtype=torch.bfloat16) * 0.8)(D, H * Dh)),
            "wk": _w((lambda *s: torch.randn(*s, dtype=torch.bfloat16) * 0.8)(D, Dh)),
            "wv": _w((lambda *s: torch.randn(*s, dtype=torch.bfloat16) * 0.05)(D, Dh)),
            "wo": _w((lambda *s: torch.randn(*s, dtype=torch.bfloat16) * 0.05)(H * Dh, D)),
        }
    _A_in = _A_setup()

    def _B_setup():
        B, S, Dm, Df = 1, 2048, 640, 1536
        return {
            "x": _w((lambda *s: torch.randn(*s, dtype=torch.bfloat16) * 0.05)(B, S, Dm)),
            "w_gate": _w((lambda *s: torch.randn(*s, dtype=torch.bfloat16) * 0.8)(Dm, Df) * (Dm ** -0.5)),
            "w_up": _w((lambda *s: torch.randn(*s, dtype=torch.bfloat16) * 0.8)(Dm, Df) * (Dm ** -0.5)),
            "w_down": _w((lambda *s: torch.randn(*s, dtype=torch.bfloat16) * 0.8)(Df, Dm) * (Df ** -0.5)),
        }
    _B_in = _B_setup()

    return {
        "A_x": _A_in["x"],
        "A_wq": _A_in["wq"],
        "A_wk": _A_in["wk"],
        "A_wv": _A_in["wv"],
        "A_wo": _A_in["wo"],
        "B_x": _B_in["x"],
        "B_w_gate": _B_in["w_gate"],
        "B_w_up": _B_in["w_up"],
        "B_w_down": _B_in["w_down"],
        "gate_w": _w((lambda *s: torch.randn(*s, dtype=torch.bfloat16) * 0.05)(640) * 16.0),
    }

def reference(A_x, A_wq, A_wk, A_wv, A_wo, B_x, B_w_gate, B_w_up, B_w_down, gate_w):
    def _A_ref(x, wq, wk, wv, wo):
        B, S, D = x.shape
        H = 32
        Dh = D // H
        q = (lambda x, *d: x.permute(*d))((x @ wq).reshape(B, S, H, Dh), 0, 2, 1, 3)
        k = x @ wk
        v = x @ wv
        scores = torch.einsum("bhqd,bkd->bhqk", q, k) * (Dh ** -0.5)
        p = _softmax(scores, axis=-1)
        o = torch.einsum("bhqk,bkd->bhqd", p, v)
        return (lambda x, *d: x.permute(*d))(o, 0, 2, 1, 3).reshape(B, S, H * Dh) @ wo

    def _B_ref(x, w_gate, w_up, w_down):
        g = torch.einsum("bsd,df->bsf", x, w_gate)
        u = torch.einsum("bsd,df->bsf", x, w_up)
        h = _gelu(g) * u
        return torch.einsum("bsf,fd->bsd", h, w_down)

    x = A_x
    g = _sigmoid((x * gate_w).sum(-1, keepdims=True))
    a = _A_ref(x, A_wq, A_wk, A_wv, A_wo)
    b = _B_ref(x, B_w_gate, B_w_up, B_w_down)
    return g * a + (1 - g) * b
```

```python
import re

TRANS = ("v_exp_", "v_log_", "v_rcp_", "v_rsq_", "v_sqrt_", "v_sin_", "v_cos_")


def vr(a, n=1):
    return f"v{a}" if n == 1 else f"v[{a}:{a+n-1}]"


def sr(a, n=1):
    return f"s{a}" if n == 1 else f"s[{a}:{a+n-1}]"


def _regs(tok):
    tok = tok.strip()
    tok = re.sub(r"^(neg|abs)\((.*)\)$", r"\2", tok)
    tok = tok.strip("-|")
    m = re.fullmatch(r"([vas])(\d+)", tok)
    if m:
        return {(m.group(1), int(m.group(2)))}
    m = re.fullmatch(r"([vas])\[(\d+):(\d+)\]", tok)
    if m:
        return {(m.group(1), i) for i in range(int(m.group(2)), int(m.group(3)) + 1)}
    if tok == "vcc":
        return {("s", 106), ("s", 107)}
    if tok == "vcc_lo":
        return {("s", 106)}
    if tok == "vcc_hi":
        return {("s", 107)}
    if tok == "m0":
        return {("m", 0)}
    if tok == "exec":
        return {("e", 0), ("e", 1)}
    if tok == "exec_lo":
        return {("e", 0)}
    if tok == "exec_hi":
        return {("e", 1)}
    return set()


class Ins:
    def __init__(self, text):
        self.text = text
        t = text.split(";")[0].strip()
        self.label = None
        self.mn = None
        self.ops = []
        self.mods = ""
        if not t or t.startswith("."):
            self.kind = "none"
            return
        if t.endswith(":"):
            self.kind = "label"
            self.label = t[:-1]
            return
        parts = t.split(None, 1)
        self.mn = mn = parts[0]
        rest = parts[1] if len(parts) > 1 else ""
        ops = [o.strip() for o in rest.split(",")] if rest else []
        if ops:
            last = ops[-1].split(None, 1)
            if last:
                ops[-1] = last[0]
                self.mods = last[1] if len(last) > 1 else ""
        self.ops = ops
        R = [_regs(o) for o in ops]
        U = lambda l: set().union(*l) if l else set()
        self.w = set()
        self.r = set()
        self.states = 1
        self.passes = 0
        if mn == "s_nop":
            self.kind = "nop"
            self.states = int(ops[0], 0) + 1
        elif mn.startswith("v_mfma"):
            self.kind = "mfma"
            self.w = R[0]
            self.ab = R[1] | R[2]
            self.c = R[3]
            self.r = self.ab | self.c
            if "32x32x4" in mn or "_2b" in mn:
                self.passes = 16
            elif "32x32" in mn:
                self.passes = 8
            elif "16x16" in mn:
                self.passes = 4
            else:
                raise ValueError(mn)
        elif mn.startswith("v_"):
            self.kind = "valu"
            if mn.startswith("v_cmpx"):
                raise ValueError("no cmpx")
            if mn.startswith(("v_add_co", "v_sub_co", "v_subrev_co", "v_addc_co", "v_subb_co", "v_div_scale", "v_mad_u64")):
                self.w = R[0] | R[1]
                self.r = U(R[2:])
            elif mn.startswith(("v_permlane", "v_swap")):
                self.w = R[0] | R[1]
                self.r = R[0] | R[1]
            elif mn.startswith(("v_fmac", "v_mac", "v_dot2c", "v_writelane", "v_pk_fmac")):
                self.w = R[0]
                self.r = U(R)
            elif mn == "v_nop":
                pass
            else:
                self.w = R[0]
                self.r = U(R[1:])
                if mn.startswith("v_cndmask") and len(ops) == 3:
                    self.r |= _regs("vcc")
                if "dst_unused:UNUSED_PRESERVE" in self.mods or "op_sel" in self.mods and ("f16" in mn or "mix" in mn):
                    self.r |= R[0]
            self.trans = mn.startswith(TRANS)
            self.dpp = any(k in self.mods for k in ("row_", "quad_perm", "wave_", "row_bcast"))
        elif mn.startswith(("buffer_", "global_", "flat_")):
            self.kind = "vmem"
            lds = (" lds" in " " + self.mods) or "_lds_" in mn
            self.lds = lds
            self.data = set()
            if mn in ("buffer_inv", "buffer_wbl2"):
                pass
            elif "load" in mn and not lds:
                self.w = R[0]
                self.r = U(R[1:])
                if "d16" in mn:
                    self.r |= R[0]
            elif lds:
                self.r = U(R) | {("m", 0)}
            else:
                self.r = U(R)
                if mn.startswith("buffer_"):
                    self.data = R[0]
                    if "atomic" in mn and "sc0" in self.mods:
                        self.w = R[0]
                else:
                    if "atomic" in mn and len(ops) == 4:
                        self.w = R[0]
                        self.r = U(R[1:])
                        self.data = R[2]
                    else:
                        self.data = R[1]
            self.wide = ("x3" in mn or "x4" in mn) and "store" in mn
        elif mn.startswith("ds_"):
            self.kind = "ds"
            if mn.startswith(("ds_read", "ds_bpermute", "ds_permute", "ds_swizzle")) or "_rtn" in mn:
                self.w = R[0]
                self.r = U(R[1:])
            else:
                self.r = U(R)
        elif mn.startswith("s_"):
            self.kind = "salu"
            if mn.startswith(("s_cmp", "s_cbranch", "s_branch", "s_waitcnt", "s_barrier", "s_endpgm", "s_setprio", "s_sleep", "s_bitcmp")):
                self.r = U(R)
            else:
                self.w = R[0] if R else set()
                self.r = U(R[1:])
                if "saveexec" in mn:
                    self.w |= _regs("exec")
        else:
            raise ValueError("unknown instruction: " + text)


MF_AB = {4: 8, 8: 12, 16: 20}
MF_C = {4: 6, 8: 10, 16: 18}
MF_WAR = {4: 3, 8: 7, 16: 15}


def need(p, c):
    n = 0
    if p.kind == "valu":
        vw = {x for x in p.w if x[0] in "va"}
        sw = {x for x in p.w if x[0] == "s"}
        if c.kind == "mfma" and vw & c.r:
            n = max(n, 2)
        if c.kind == "valu":
            if p.trans and vw & c.r and not c.trans:
                n = max(n, 1)
            if p.trans and vw & (c.r | c.w):
                n = max(n, 1)
            if sw & c.r:
                n = max(n, 4 if c.mn.startswith(("v_readlane", "v_writelane")) else 2)
            if vw & c.r:
                if c.mn.startswith(("v_readlane", "v_readfirstlane")):
                    n = max(n, 1)
                if c.mn.startswith("v_permlane") or c.dpp:
                    n = max(n, 2)
                if "op_sel" in p.mods or "sdwa" in p.mn or "dst_sel" in p.mods:
                    n = max(n, 1)
        if c.kind in ("vmem",) and sw & c.r:
            n = max(n, 5)
        if c.kind in ("vmem", "ds") and p.trans and vw & c.r:
            n = max(n, 1)
    elif p.kind == "mfma":
        if c.kind == "mfma":
            if p.w & c.ab:
                n = max(n, MF_AB[p.passes])
            if p.w & c.c and not (p.w == c.c and p.passes == c.passes):
                n = max(n, MF_C[p.passes])
            if p.w & c.w and not (p.w == c.w and p.passes == c.passes):
                n = max(n, MF_C[p.passes])
        elif c.kind in ("valu", "vmem", "ds"):
            if p.w & (c.r | c.w):
                n = max(n, MF_AB[p.passes])
            if p.c & c.w:
                n = max(n, MF_WAR[p.passes])
    elif p.kind == "vmem":
        if p.wide and p.data & c.w:
            n = max(n, 2)
    elif p.kind == "salu":
        if ("m", 0) in p.w and c.kind == "vmem" and c.lds:
            n = max(n, 1)
        if ("m", 0) in p.w and c.kind == "ds" and "addtid" in c.mn:
            n = max(n, 1)
    return n


WINDOW = 24


def _required(hist, c):
    age = 0
    extra = 0
    for p in reversed(hist):
        if p.kind in ("none", "label"):
            continue
        k = need(p, c) - age
        if k > extra:
            extra = k
        age += p.states
        if age > WINDOW:
            break
    return extra


def _nops(n):
    out = []
    while n > 0:
        k = min(n, 16)
        out.append(Ins(f"    s_nop {k-1}"))
        n -= k
    return out


def fix(lines, verbose=False):
    ins = [Ins(l) for l in lines]
    out = []
    added = 0
    for c in ins:
        if c.kind not in ("none", "label", "nop"):
            e = _required(out[-60:], c)
            if e > 0:
                out += _nops(e)
                added += e
        if c.kind == "salu" and c.mn in ("s_endpgm",):
            pass
        out.append(c)
    changed = True
    while changed:
        changed = False
        labels = {c.label: i for i, c in enumerate(out) if c.kind == "label"}
        for i, c in enumerate(out):
            if c.kind == "salu" and c.mn.startswith(("s_cbranch", "s_branch")):
                tgt = labels[c.ops[0]]
                hist = out[max(0, i - 60): i + 1]
                base = len(hist)
                worst = 0
                st = 0
                for d in out[tgt: tgt + 60]:
                    if d.kind in ("none", "label"):
                        continue
                    if d.kind != "nop":
                        worst = max(worst, _required(hist, d))
                    hist = hist + [d]
                    st += d.states
                    if st > WINDOW or (d.kind == "salu" and d.mn in ("s_branch", "s_endpgm")):
                        break
                if worst > 0:
                    out[i:i] = _nops(worst)
                    added += worst
                    changed = True
                    break
    if verbose:
        print("wait states added:", added)
    return [c.text for c in out]


class Asm:
    def __init__(self):
        self.lines = []
        self.vm = []

    def __call__(self, s, *more):
        for x in (s,) + more:
            for l in x.split("\n"):
                l = l.rstrip()
                if not l.strip():
                    continue
                if l.strip().endswith(":") or l.strip().startswith((".", ";")):
                    self.lines.append(l.strip())
                else:
                    self.lines.append("    " + l.strip())

    def vmem(self, s, tag=None):
        self(s)
        self.vm.append(tag)

    def wait_vm(self, tag, extra=""):
        idx = max(i for i, t in enumerate(self.vm) if t == tag)
        n = len(self.vm) - 1 - idx
        assert n <= 63, n
        self(f"s_waitcnt vmcnt({n}){extra}")

    def reset_vm(self):
        self.vm = []
```

```python
import sys, math, struct
from asmlib import Asm, fix, vr, sr

NAME = "gated_mix__grouped_kv_mqa__glu_gated_geglu__prompt"

QF = 0x000000
KF = 0x300000
KF2 = 0x310000
VF = 0x320000
GG = 0x340000
AF = 0x400000
WF = 0xD00000
WS_SIZE = 0x1000000
NKS = 136

LOG2E = math.log2(math.e)


def f32(x):
    return "0x%08x" % struct.unpack("<I", struct.pack("<f", x))[0]


def header(a, name):
    a(".p2align 8")
    a(f".globl {name}")
    a(f".type {name},@function")
    a(f"{name}:")


def rc_decode(a, sR, sC, t0, t1, done):
    a(f"s_cmp_ge_u32 s2, 256",
      f"s_cbranch_scc1 {done}",
      f"s_and_b32 s{t0}, s2, 7",
      f"s_lshr_b32 s{t1}, s2, 3",
      f"s_lshr_b32 s{sR}, s{t0}, 1",
      f"s_lshl_b32 s{sR}, s{sR}, 3",
      f"s_and_b32 s{sC}, s{t1}, 7",
      f"s_add_u32 s{sR}, s{sR}, s{sC}",
      f"s_and_b32 s{sC}, s{t0}, 1",
      f"s_lshl_b32 s{sC}, s{sC}, 2",
      f"s_lshr_b32 s{t1}, s{t1}, 3",
      f"s_add_u32 s{sC}, s{sC}, s{t1}")


def srd(a, d, ptr, size, off=None):
    if off is None:
        a(f"s_mov_b32 s{d}, s{ptr}", f"s_mov_b32 s{d+1}, s{ptr+1}")
    else:
        a(f"s_add_u32 s{d}, s{ptr}, s{off}", f"s_addc_u32 s{d+1}, s{ptr+1}, 0")
    if isinstance(size, int):
        a(f"s_mov_b32 s{d+2}, {size}")
    else:
        a(f"s_mov_b32 s{d+2}, {size}")
    a(f"s_mov_b32 s{d+3}, 0x00020000")


def x_dma_addr(a, vL, vD0, vD1, sW, t):
    a(f"v_lshrrev_b32 v{t}, 3, v{vL}",
      f"s_lshl_b32 s40, s{sW}, 4",
      f"v_add_u32 v{t}, s40, v{t}",
      f"v_mul_u32_u24 v{t}, 1280, v{t}",
      f"v_lshrrev_b32 v{t+1}, 4, v{vL}",
      f"v_and_b32 v{t+2}, 7, v{vL}",
      f"v_xor_b32 v{t+1}, v{t+1}, v{t+2}",
      f"v_lshl_add_u32 v{vD0}, v{t+1}, 4, v{t}",
      f"v_xor_b32 v{t+1}, 4, v{t+1}",
      f"v_lshl_add_u32 v{vD1}, v{t+1}, 4, v{t}",
      f"v_add_u32 v{vD1}, {8*1280}, v{vD1}")


def x_read_addr(a, vL, vX, t):
    a(f"v_and_b32 v{t}, 31, v{vL}",
      f"v_lshrrev_b32 v{t+1}, 1, v{t}",
      f"v_and_b32 v{t+1}, 7, v{t+1}",
      f"v_lshrrev_b32 v{t+2}, 5, v{vL}",
      f"v_xor_b32 v{t+1}, v{t+1}, v{t+2}",
      f"v_lshlrev_b32 v{t}, 7, v{t}")
    for ss in range(4):
        a(f"v_xor_b32 v{t+2}, {2*ss}, v{t+1}",
          f"v_lshl_add_u32 v{vX+ss}, v{t+2}, 4, v{t}")


K1_SLOT = 18432
K1_NS = 7
K1_KV = K1_SLOT * K1_NS
K1_G = K1_KV + 25600
K1_LDS = K1_G + 5120


def gen_k1():
    a = Asm()
    header(a, "k1_kernel")
    sR, sC, sW = 16, 17, 18
    SX, SWQ, SKV, SWS, SG = 20, 24, 28, 32, 36
    rc_decode(a, sR, sC, 40, 41, "K1_done")
    a("s_load_dwordx8 s[4:11], s[0:1], 0",
      "s_load_dwordx2 s[12:13], s[0:1], 72",
      "s_load_dwordx2 s[14:15], s[0:1], 96",
      "v_lshrrev_b32 v2, 6, v0",
      "v_and_b32 v1, 63, v0",
      f"v_readfirstlane_b32 s{sW}, v2")
    vL = 1
    vXd0, vXd1, vWd = 10, 11, 12
    vXr = 13
    vWr = 25
    vF = 32
    vAcc = 80
    a(f"v_mul_u32_u24 v2, 205, v0",
      f"v_lshrrev_b32 v2, 11, v2",
      f"v_mul_u32_u24 v3, 10, v2",
      f"v_sub_u32 v3, v0, v3",
      f"v_mul_u32_u24 v2, 1280, v2",
      f"v_lshl_add_u32 v{vWd}, v3, 4, v2")
    x_dma_addr(a, vL, vXd0, vXd1, sW, 2)
    x_read_addr(a, vL, vXr, 2)
    for st in (1, 2):
        for ss in range(4):
            a(f"v_add_u32 v{vXr+4*st+ss}, {3*st*K1_SLOT}, v{vXr+ss}")
    a(f"s_mul_i32 s40, s{sR}, {64*1280}",
      f"s_mul_i32 s41, s{sC}, 160",
      f"s_sub_u32 s42, {640*1280}, s41",
      f"s_lshl_b32 s43, s{sW}, 11",
      f"s_lshl_b32 s44, s{sW}, 10",
      "s_waitcnt lgkmcnt(0)")
    srd(a, SX, 4, 64 * 1280, off=40)
    srd(a, SWQ, 6, "s42", off=41)
    srd(a, SWS, 14, WS_SIZE)

    def dma_x(s):
        slot = s % K1_NS
        for e in range(2):
            a(f"s_add_u32 m0, s43, {slot*K1_SLOT + e*1024}",
              f"s_mov_b32 s45, {s*128}")
            a.vmem(f"buffer_load_dwordx4 v{vXd0+e}, {sr(SX,4)}, s45 offen lds", ("st", s))

    def dma_w(s):
        slot = s % K1_NS
        for e in range(2):
            a(f"s_add_u32 m0, s44, {slot*K1_SLOT + 8192 + e*5120}",
              f"s_mov_b32 s45, {(s*64 + e*32)*1280}")
            a.vmem(f"buffer_load_dwordx4 v{vWd}, {sr(SWQ,4)}, s45 offen lds", ("st", s))

    a(f"s_cmp_eq_u32 s{sW}, 4", "s_cbranch_scc1 K1_w4")
    for s in range(K1_NS):
        dma_x(s)
        dma_w(s)
    a(f"v_lshrrev_b32 v2, 4, v{vL}",
      f"v_and_b32 v3, 1, v2",
      f"v_lshlrev_b32 v3, 2, v3",
      f"v_and_b32 v4, 3, v{vL}",
      f"v_add_u32 v3, v3, v4",
      f"v_min_u32 v3, 4, v3",
      f"v_lshrrev_b32 v2, 1, v2",
      f"v_lshlrev_b32 v2, 3, v2",
      f"v_bfe_u32 v4, v{vL}, 2, 2",
      f"v_add_u32 v2, v2, v4",
      f"v_mul_u32_u24 v2, 160, v2",
      f"v_lshl_add_u32 v2, v3, 3, v2",
      f"s_mul_i32 s40, s{sW}, 40",
      f"s_add_u32 s40, s40, 8192",
      f"v_add_u32 v{vWr}, s40, v2",
      f"v_add_u32 v{vWr+1}, {3*K1_SLOT}, v{vWr}",
      f"v_add_u32 v{vWr+2}, {6*K1_SLOT}, v{vWr}")
    for s in range(10):
        slot = s % K1_NS
        st, so = slot // 3, (slot % 3) * K1_SLOT
        a.wait_vm(("st", s))
        a("s_barrier")
        if s >= 1 and s + K1_NS - 1 < 10:
            dma_x(s + K1_NS - 1)
            dma_w(s + K1_NS - 1)
        for ss in range(4):
            f = vF + 12 * ss
            a(f"ds_read_b64_tr_b16 {vr(f,2)}, v{vWr+st} offset:{so + ss*2560}",
              f"ds_read_b64_tr_b16 {vr(f+2,2)}, v{vWr+st} offset:{so + ss*2560 + 640}",
              f"ds_read_b128 {vr(f+4,4)}, v{vXr+4*st+ss} offset:{so}",
              f"ds_read_b128 {vr(f+8,4)}, v{vXr+4*st+ss} offset:{so + 4096}")
        for ss in range(4):
            f = vF + 12 * ss
            a(f"s_waitcnt lgkmcnt({12-4*ss})")
            for tt in range(2):
                acc = vr(vAcc + 16 * tt, 16)
                c = "0" if (s == 0 and ss == 0) else acc
                a(f"v_mfma_f32_32x32x16_bf16 {acc}, {vr(f,4)}, {vr(f+4+4*tt,4)}, {c}")
    a(f"s_lshl_b32 s40, s{sR}, 6",
      f"s_lshl_b32 s41, s{sC}, 2",
      f"s_add_u32 s40, s40, s41",
      f"s_add_u32 s40, s40, s{sW}",
      f"s_mul_i32 s40, s40, 1536",
      f"s_add_u32 s41, s40, {32*1536}",
      f"v_lshlrev_b32 v2, 4, v{vL}",
      f"v_lshlrev_b32 v3, 3, v{vL}",
      f"s_mov_b32 s42, {f32(LOG2E / math.sqrt(20.0))}")
    for tt in range(2):
        b = vAcc + 16 * tt
        for i in range(12):
            a(f"v_mul_f32 v{b+i}, s42, v{b+i}")
        for i in range(6):
            a(f"v_cvt_pk_bf16_f32 v{b+i}, v{b+2*i}, v{b+2*i+1}")
        a(f"buffer_store_dwordx4 {vr(b,4)}, v2, {sr(SWS,4)}, s{40+tt} offen",
          f"buffer_store_dwordx2 {vr(b+4,2)}, v3, {sr(SWS,4)}, s{40+tt} offen offset:1024")
    a("s_endpgm")

    a("K1_w4:")
    a(f"s_cmp_lt_u32 s{sC}, 4", "s_cbranch_scc1 K1_w4kv")
    a.reset_vm()
    for s in range(K1_NS):
        dma_w(s)
    for s in range(10):
        a.wait_vm(("st", s))
        a("s_barrier")
        if s >= 1 and s + K1_NS - 1 < 10:
            dma_w(s + K1_NS - 1)
    a("s_endpgm")

    a("K1_w4kv:")
    a.reset_vm()
    a(f"s_cmp_lt_u32 s{sC}, 2",
      f"s_cselect_b32 s{SKV}, s8, s10",
      f"s_cselect_b32 s{SKV+1}, s9, s11",
      f"s_mov_b32 s{SKV+2}, 25600",
      f"s_mov_b32 s{SKV+3}, 0x00020000")
    srd(a, SG, 12, 1280)
    vG = 100
    a(f"v_lshlrev_b32 v2, 1, v{vL}", f"v_lshlrev_b32 v5, 4, v{vL}")
    for i in range(10):
        a.vmem(f"buffer_load_ushort v{vG+i}, v2, {sr(SG,4)}, 0 offen offset:{128*i}", "g")
    kvp = 0

    def dma_kv(upto, tag):
        nonlocal kvp
        while kvp < upto:
            a(f"s_mov_b32 m0, {K1_KV + kvp*1024}",
              f"s_mov_b32 s45, {kvp*1024}")
            a.vmem(f"buffer_load_dwordx4 v5, {sr(SKV,4)}, s45 offen lds", tag)
            kvp += 1
    for s in range(K1_NS):
        dma_w(s)
        dma_kv((2560 * (s + 1) + 1023) // 1024, ("st", s))
    dma_kv(25, ("st", K1_NS - 1))
    a(f"v_lshlrev_b32 v3, 3, v{vL}", f"v_add_u32 v3, {K1_G}, v3")
    a.wait_vm("g")
    for i in range(10):
        a(f"ds_write_b16 v3, v{vG+i} offset:{512*i}")
    vA0, vA1, vInc = 6, 7, 8
    a(f"v_lshrrev_b32 v2, 4, v{vL}",
      f"v_and_b32 v3, 1, v2",
      f"v_lshlrev_b32 v3, 2, v3",
      f"v_and_b32 v4, 3, v{vL}",
      f"v_add_u32 v3, v3, v4",
      f"v_cmp_lt_u32 vcc, 5, v3",
      f"v_min_u32 v3, 4, v3",
      f"v_lshlrev_b32 v3, 3, v3",
      f"v_add_u32 v3, {K1_KV}, v3",
      f"v_mov_b32 v9, {K1_G}",
      f"v_cndmask_b32 v3, v3, v9, vcc",
      f"v_mov_b32 v9, 40",
      f"v_cndmask_b32 v9, v9, 8, vcc",
      f"v_lshrrev_b32 v2, 1, v2",
      f"v_lshlrev_b32 v2, 3, v2",
      f"v_bfe_u32 v4, v{vL}, 2, 2",
      f"v_add_u32 v2, v2, v4",
      f"v_mad_u32_u24 v{vA0}, v2, v9, v3",
      f"v_lshl_add_u32 v{vA1}, v9, 2, v{vA0}",
      f"v_lshlrev_b32 v{vInc}, 4, v9",
      f"s_and_b32 s46, s{sC}, 1",
      f"s_lshl_b32 s47, s46, 12")
    for i in range(12):
        a(f"v_add_u32 v{vXr+i}, s47, v{vXr+i}")
    a(f"s_cmp_lt_u32 s{sC}, 2", "s_cbranch_scc0 K1_w4v")
    saved = list(a.vm)
    for isv in range(2):
        a.vm = list(saved)
        if isv:
            a("K1_w4v:")
        for s in range(10):
            slot = s % K1_NS
            st, so = slot // 3, (slot % 3) * K1_SLOT
            a.wait_vm(("st", s))
            a("s_barrier")
            if s >= 1 and s + K1_NS - 1 < 10:
                dma_w(s + K1_NS - 1)
            for ss in range(4):
                f = vF + 8 * ss
                a(f"ds_read_b64_tr_b16 {vr(f,2)}, v{vA0}",
                  f"ds_read_b64_tr_b16 {vr(f+2,2)}, v{vA1}",
                  f"ds_read_b128 {vr(f+4,4)}, v{vXr+4*st+ss} offset:{so}",
                  f"v_add_u32 v{vA0}, v{vA0}, v{vInc}",
                  f"v_add_u32 v{vA1}, v{vA1}, v{vInc}")
            for ss in range(4):
                f = vF + 8 * ss
                a(f"s_waitcnt lgkmcnt({9-3*ss})")
                acc = vr(vAcc, 16)
                c = "0" if (s == 0 and ss == 0) else acc
                if isv:
                    a(f"v_mfma_f32_32x32x16_bf16 {acc}, {vr(f+4,4)}, {vr(f,4)}, {c}")
                else:
                    a(f"v_mfma_f32_32x32x16_bf16 {acc}, {vr(f,4)}, {vr(f+4,4)}, {c}")
        b = vAcc
        a(f"s_lshl_b32 s40, s{sR}, 1", f"s_add_u32 s40, s40, s46")
        if not isv:
            a(f"v_mul_f32 v{b+12}, {f32(-LOG2E)}, v{b+12}",
              f"v_exp_f32 v{b+12}, v{b+12}")
            for i in range(6):
                a(f"v_cvt_pk_bf16_f32 v{b+i}, v{b+2*i}, v{b+2*i+1}")
            a(f"v_add_f32 v{b+12}, 1.0, v{b+12}",
              f"v_rcp_f32 v{b+12}, v{b+12}",
              f"s_lshl_b32 s41, s40, 10",
              f"s_add_u32 s41, s41, {KF}",
              f"buffer_store_dwordx4 {vr(b,4)}, v5, {sr(SWS,4)}, s41 offen",
              f"s_lshl_b32 s41, s{sR}, 9",
              f"s_add_u32 s41, s41, {KF2}",
              f"v_lshlrev_b32 v3, 3, v{vL}",
              f"v_lshlrev_b32 v4, 2, v{vL}",
              f"s_lshl_b32 s42, s40, 7",
              f"s_add_u32 s42, s42, {GG}",
              f"s_cmp_eq_u32 s46, 0",
              f"s_cselect_b32 exec_lo, -1, 0",
              f"s_cselect_b32 exec_hi, 0, -1",
              f"buffer_store_dwordx2 {vr(b+4,2)}, v3, {sr(SWS,4)}, s41 offen",
              f"s_mov_b32 exec_lo, -1",
              f"s_mov_b32 exec_hi, 0",
              f"buffer_store_dword v{b+12}, v4, {sr(SWS,4)}, s42 offen",
              "s_endpgm")
        else:
            a(f"v_and_b32 v3, 31, v{vL}",
              f"v_cmp_eq_u32 vcc, 20, v3",
              f"v_mov_b32 v4, 0x3f803f80")
            for i in range(8):
                a(f"v_cvt_pk_bf16_f32 v{b+i}, v{b+2*i}, v{b+2*i+1}")
            for i in range(8):
                a(f"v_cndmask_b32 v{b+i}, v{b+i}, v4, vcc")
            a(f"s_lshl_b32 s41, s40, 11",
              f"s_add_u32 s41, s41, {VF}",
              f"buffer_store_dwordx4 {vr(b,4)}, v5, {sr(SWS,4)}, s41 offen",
              f"buffer_store_dwordx4 {vr(b+4,4)}, v5, {sr(SWS,4)}, s41 offen offset:1024")
    a("K1_done:")
    a("s_endpgm")
    return fix(a.lines), dict(name="k1_kernel", grid=256, block=320, lds=K1_LDS, vgpr=128, accum=128)


FU_X = 0
FU_RING = 81920
FU_SLOT = 6272
FU_LDS = FU_RING + 4 * 2 * FU_SLOT


def ffn_role(a, sR, sC, sW, vL, P, xcnt=None):
    SX, SWG, SWU, SRP, SWS = 20, 24, 28, 36, P["SWS"]
    vXd0, vXd1 = 10, 11
    vWd = 12
    vXr = 15
    vWr = 23
    vGt = 24
    vF = 28
    vAcc = 68
    a.reset_vm()
    x_dma_addr(a, vL, vXd0, vXd1, sW, 2)
    for i in range(3):
        a(f"v_add_u32 v2, {64*i}, v{vL}",
          f"v_mul_u32_u24 v3, 171, v2",
          f"v_lshrrev_b32 v3, 10, v3",
          f"v_mul_u32_u24 v4, 6, v3",
          f"v_sub_u32 v4, v2, v4",
          f"v_mul_u32_u24 v3, 3072, v3",
          f"v_lshl_add_u32 v{vWd+i}, v4, 4, v3")
    a(f"s_mul_i32 s40, s{sR}, {64*1280}",
      f"s_mul_i32 s41, s{sC}, 384",
      f"s_mul_i32 s42, s{sW}, 96",
      f"s_add_u32 s41, s41, s42",
      f"s_sub_u32 s42, {640*3072}, s41",
      f"s_lshl_b32 s43, s{sW}, 11",
      f"s_mul_i32 s44, s{sW}, {2*FU_SLOT}",
      f"s_add_u32 s44, s44, {FU_RING}")
    srd(a, SX, P["x"], 64 * 1280, off=40)
    srd(a, SWG, P["wg"], "s42", off=41)
    srd(a, SWU, P["wu"], "s42", off=41)

    def dma_w(it):
        slot = it & 1
        a(f"s_mov_b32 s45, {it*32*3072}")
        for arr, S in ((0, SWG), (1, SWU)):
            for i in range(3):
                a(f"s_add_u32 m0, s44, {slot*FU_SLOT + arr*3200 + i*1024}")
                a.vmem(f"buffer_load_dwordx4 v{vWd+i}, {sr(S,4)}, s45 offen lds", ("w", it))
    dma_w(0)
    for kb in range(10):
        for e in range(2):
            a(f"s_add_u32 m0, s43, {FU_X + kb*8192 + e*1024}",
              f"s_mov_b32 s45, {kb*128}")
            a.vmem(f"buffer_load_dwordx4 v{vXd0+e}, {sr(SX,4)}, s45 offen lds", "x")
    dma_w(1)
    a(f"v_and_b32 v2, 31, v{vL}", f"v_lshlrev_b32 v2, 2, v2",
      f"s_lshl_b32 s40, s{sR}, 8", f"s_add_u32 s40, s40, {GG}")
    a.vmem(f"buffer_load_dword v{vGt}, v2, {sr(SWS,4)}, s40 offen", "g")
    a.vmem(f"buffer_load_dword v{vGt+1}, v2, {sr(SWS,4)}, s40 offen offset:128", "g")
    x_read_addr(a, vL, vXr, 2)
    for ss in range(4):
        a(f"v_add_u32 v{vXr+4+ss}, {5*8192}, v{vXr+ss}")
    a(
      f"v_lshrrev_b32 v2, 4, v{vL}",
      f"v_and_b32 v3, 1, v2",
      f"v_mul_u32_u24 v3, 3200, v3",
      f"v_lshrrev_b32 v2, 1, v2",
      f"v_lshlrev_b32 v2, 3, v2",
      f"v_bfe_u32 v4, v{vL}, 2, 2",
      f"v_add_u32 v2, v2, v4",
      f"v_mul_u32_u24 v2, 96, v2",
      f"v_add_u32 v3, v2, v3",
      f"v_and_b32 v4, 3, v{vL}",
      f"v_lshl_add_u32 v3, v4, 3, v3",
      f"v_add_u32 v{vWr}, s44, v3")
    if xcnt is None:
        a.wait_vm("x")
        a("s_barrier")
    else:
        a("s_barrier",
          f"v_mov_b32 v2, {xcnt}",
          f"v_mov_b32 v3, 1")
        a.wait_vm("x")
        a(f"ds_add_u32 v2, v3")
        a("FU_xw:")
        a(f"ds_read_b32 v3, v2",
          "s_waitcnt lgkmcnt(0)",
          "v_readfirstlane_b32 s40, v3",
          "s_cmp_ge_u32 s40, 256",
          "s_cbranch_scc0 FU_xw")

    def reads(ks):
        it, ss = ks // 2, ks % 2
        f = vF + 20 * (ks & 1)
        kb, s4 = ks // 4, ks % 4
        st, ko = kb // 5, (kb % 5) * 8192
        for tt in range(2):
            a(f"ds_read_b128 {vr(f+12+4*tt,4)}, v{vXr+4*st+s4} offset:{FU_X + ko + tt*4096}")
        for ti in range(3):
            for rd in range(2):
                a(f"ds_read_b64_tr_b16 {vr(f+4*ti+2*rd,2)}, v{vWr} offset:{(it&1)*FU_SLOT + ss*1536 + rd*384 + ti*32}")
    reads(0)
    for ks in range(40):
        if ks + 1 < 40:
            if (ks + 1) % 2 == 0:
                a.wait_vm(("w", (ks + 1) // 2))
            reads(ks + 1)
            a("s_waitcnt lgkmcnt(8)")
        else:
            a("s_waitcnt lgkmcnt(0)")
        if ks % 2 == 1 and ks // 2 + 2 < 20:
            dma_w(ks // 2 + 2)
        f = vF + 20 * (ks & 1)
        for ti in range(3):
            for tt in range(2):
                acc = vr(vAcc + 16 * (2 * ti + tt), 16)
                c = "0" if ks == 0 else acc
                a(f"v_mfma_f32_32x32x16_bf16 {acc}, {vr(f+4*ti,4)}, {vr(f+12+4*tt,4)}, {c}")
    c0 = -2.0 * math.sqrt(2.0 / math.pi) * LOG2E
    a(f"s_mov_b32 s46, {f32(c0*0.044715)}",
      f"v_mov_b32 v3, {f32(c0)}",
      f"v_sub_f32 v{vGt}, 1.0, v{vGt}",
      f"v_sub_f32 v{vGt+1}, 1.0, v{vGt+1}",
      f"v_lshlrev_b32 v2, 4, v{vL}",
      f"s_mul_i32 s40, s{sR}, {2*NKS}",
      f"s_mul_i32 s41, s{sC}, 12",
      f"s_add_u32 s40, s40, s41",
      f"s_mul_i32 s41, s{sW}, 3",
      f"s_add_u32 s40, s40, s41",
      f"s_lshl_b32 s40, s40, 10",
      f"s_add_u32 s40, s40, {AF + 40*1024}",
      f"s_add_u32 s41, s40, {NKS*1024}")
    T = vF
    for ti in range(3):
        for tt in range(2):
            b = vAcc + 16 * (2 * ti + tt)
            for i in range(8):
                a(f"v_mul_f32 v{T+i}, v{b+i}, v{b+i}")
            for i in range(8):
                a(f"v_fma_f32 v{T+i}, v{T+i}, s46, v3")
            for i in range(8):
                a(f"v_mul_f32 v{T+i}, v{T+i}, v{b+i}")
            for i in range(8):
                a(f"v_exp_f32 v{T+i}, v{T+i}")
            for i in range(8):
                a(f"v_mul_f32 v{b+8+i}, v{b+8+i}, v{vGt+tt}")
            for i in range(8):
                a(f"v_add_f32 v{T+i}, 1.0, v{T+i}")
            for i in range(8):
                a(f"v_rcp_f32 v{T+i}, v{T+i}")
            for i in range(8):
                a(f"v_mul_f32 v{b+i}, v{b+i}, v{b+8+i}")
            for i in range(8):
                a(f"v_mul_f32 v{b+i}, v{b+i}, v{T+i}")
            for i in range(4):
                a(f"v_cvt_pk_bf16_f32 v{b+i}, v{b+2*i}, v{b+2*i+1}")
            a(f"buffer_store_dwordx4 {vr(b,4)}, v2, {sr(SWS,4)}, s{40+tt} offen offset:{ti*1024}")
    a(f"s_lshl_b32 s47, s{sW}, 5", f"s_add_u32 s47, s47, s{sR}")
    a("FU_rp:")
    a(
      f"s_sub_u32 s48, s47, 40",
      f"s_lshl_b32 s48, s48, 4",
      f"s_mov_b32 s49, 4",
      f"s_mov_b32 s50, 8",
      f"s_mov_b32 s{SRP}, s{P['wd']}",
      f"s_mov_b32 s{SRP+1}, s{P['wd']+1}",
      f"s_mov_b32 s{SRP+2}, {1536*1280}",
      f"s_mov_b32 s{SRP+3}, 0x00020000",
      f"s_cmp_ge_u32 s47, 40",
      f"s_cbranch_scc1 FU_rp2",
      f"s_mov_b32 s{SRP}, s{P['wo']}",
      f"s_mov_b32 s{SRP+1}, s{P['wo']+1}",
      f"s_mov_b32 s{SRP+2}, {640*1280}",
      f"s_mul_i32 s51, s47, 205",
      f"s_lshr_b32 s51, s51, 10",
      f"s_mul_i32 s52, s51, 5",
      f"s_sub_u32 s52, s47, s52",
      f"s_mul_i32 s48, s51, 80",
      f"s_mul_i32 s53, s52, 20",
      f"s_cmp_eq_u32 s52, 4",
      f"s_cselect_b32 s53, 16, s53",
      f"s_cselect_b32 s49, 40, s49",
      f"s_cselect_b32 s50, 20, s50",
      f"s_add_u32 s48, s48, s53")
    a("FU_rp2:")
    a(f"s_mul_i32 s49, s49, 1280",
      f"v_lshrrev_b32 v2, 5, v{vL}",
      f"v_mul_lo_u32 v2, v2, s49",
      f"v_and_b32 v3, 31, v{vL}",
      f"v_lshl_add_u32 v2, v3, 1, v2",
      f"s_mul_i32 s51, s48, 1280",
      f"s_mul_i32 s52, s{sC}, 160",
      f"s_add_u32 s51, s51, s52",
      f"s_mul_i32 s52, s50, 1280",
      f"s_add_u32 s52, s52, s51")
    for ti in range(3):
        for j in range(8):
            a(f"buffer_load_ushort v{T+8*ti+j}, v2, {sr(SRP,4)}, s{51+(j>>2)} offen offset:{(j&3)*1280 + 64*ti}")
    a(f"s_mul_i32 s51, s{sC}, {NKS}",
      f"s_add_u32 s51, s51, s47",
      f"s_mul_i32 s51, s51, 2560",
      f"s_add_u32 s51, s51, {WF}",
      f"v_lshlrev_b32 v3, 4, v{vL}",
      f"v_lshrrev_b32 v4, 5, v{vL}",
      f"v_lshlrev_b32 v4, 8, v4",
      f"v_and_b32 v5, 15, v{vL}",
      f"v_lshl_add_u32 v4, v5, 4, v4",
      f"v_and_b32 v5, 16, v{vL}",
      f"v_lshlrev_b32 v5, 27, v5",
      f"v_or_b32 v4, v4, v5",
      "s_waitcnt vmcnt(0)")
    for ti in range(3):
        for j in range(4):
            a(f"v_lshl_or_b32 v{T+8*ti+j}, v{T+8*ti+2*j+1}, 16, v{T+8*ti+2*j}")
        a(f"buffer_store_dwordx4 {vr(T+8*ti,4)}, v{3 if ti<2 else 4}, {sr(SWS,4)}, s51 offen offset:{1024*ti}")
    a(f"s_add_u32 s47, s47, 128",
      f"s_cmp_lt_u32 s47, {NKS}",
      f"s_cbranch_scc1 FU_rp")


def gen_k2a():
    a = Asm()
    header(a, "k2a_kernel")
    sR, sC, sW = 16, 17, 18
    rc_decode(a, sR, sC, 40, 41, "K2A_done")
    a("s_load_dwordx2 s[4:5], s[0:1], 0",
      "s_load_dwordx2 s[6:7], s[0:1], 32",
      "s_load_dwordx4 s[8:11], s[0:1], 48",
      "s_load_dwordx2 s[12:13], s[0:1], 64",
      "s_load_dwordx2 s[14:15], s[0:1], 96",
      "v_lshrrev_b32 v2, 6, v0",
      "v_and_b32 v1, 63, v0",
      f"v_readfirstlane_b32 s{sW}, v2",
      "s_waitcnt lgkmcnt(0)")
    srd(a, 32, 14, WS_SIZE)
    ffn_role(a, sR, sC, sW, 1, dict(x=4, wo=6, wg=8, wu=10, wd=12, SWS=32))
    a("K2A_done:")
    a("s_endpgm")
    return fix(a.lines), dict(name="k2a_kernel", grid=256, block=256, lds=FU_LDS, vgpr=168, accum=168)


AT_QT = 3072


def att_role(a, sR, sC, sW, SWS, RED, CNT, pfx, force_fallback=False):
    vP, vA16, vA8, vX = 0, 1, 2, 3
    K16, K4, V, S, O, Q16, Q4 = 4, 36, 44, 108, 140, 156, 164
    a.reset_vm()
    a(f"v_and_b32 v3, 63, v0",
      f"v_lshlrev_b32 v{vA16}, 4, v3",
      f"v_lshlrev_b32 v{vA8}, 3, v3",
      f"s_lshl_b32 s40, s{sR}, 6",
      f"s_lshl_b32 s41, s{sC}, 2",
      f"s_add_u32 s40, s40, s41",
      f"s_mul_i32 s40, s40, 1536",
      f"s_lshl_b32 s41, s{sW}, 13",
      f"s_add_u32 s41, s41, {KF}",
      f"s_lshl_b32 s42, s{sW}, 11",
      f"s_add_u32 s42, s42, {KF2}",
      f"s_lshl_b32 s43, s{sW}, 14",
      f"s_add_u32 s43, s43, {VF}")

    def q_off(i, d):
        a(f"s_add_u32 s44, s{sW}, {i}",
          f"s_and_b32 s44, s44, 7",
          f"s_lshr_b32 s{d}, s44, 2",
          f"s_mul_i32 s{d}, s{d}, {32*1536 - 4*1536}",
          f"s_mul_i32 s44, s44, 1536",
          f"s_add_u32 s{d}, s{d}, s44",
          f"s_add_u32 s{d}, s{d}, s40")

    SQ = 46

    def load_q16(i):
        a.vmem(f"buffer_load_dwordx4 {vr(Q16+4*(i&1),4)}, v{vA16}, {sr(SWS,4)}, s{SQ} offen", ("q16", i))

    def load_q4(i, hf):
        a("s_mov_b32 exec_hi, 0" if hf == 0 else "s_mov_b32 exec_lo, 0")
        a.vmem(f"buffer_load_dwordx2 {vr(Q4+2*hf,2)}, v{vA8}, {sr(SWS,4)}, s{SQ} offen offset:1024", ("q4", i, hf))
        a("s_mov_b32 exec_hi, -1" if hf == 0 else "s_mov_b32 exec_lo, -1")

    def load_k(j, tagged=True):
        if j == 4:
            a("s_add_u32 s41, s41, 4096")
        a.vmem(f"buffer_load_dwordx4 {vr(K16+4*j,4)}, v{vA16}, {sr(SWS,4)}, s41 offen offset:{1024*(j%4)}", ("k", j))
        if j % 2 == 0:
            a.vmem(f"buffer_load_dwordx2 {vr(K4+j,2)}, v{vA8}, {sr(SWS,4)}, s42 offen offset:{256*j}", ("k", j))

    def load_v(j):
        if j and j % 2 == 0:
            a("s_add_u32 s43, s43, 4096")
        for hf in range(2):
            a.vmem(f"buffer_load_dwordx4 {vr(V+8*j+4*hf,4)}, v{vA16}, {sr(SWS,4)}, s43 offen offset:{2048*(j%2)+1024*hf}", ("v", j))

    for i in range(4):
        a(f"v_mov_b32 v{Q4+i}, 0")
    q_off(0, SQ)
    load_q16(0)
    load_q4(0, 0)
    load_q4(0, 1)
    for j in range(8):
        load_k(j)
        load_v(j)
    a(f"v_and_b32 v{S}, 15, v3",
      f"v_lshlrev_b32 v{S}, 2, v{S}",
      f"v_add_u32 v{S}, {CNT}, v{S}",
      f"v_mov_b32 v{S+1}, 0",
      f"ds_write_b32 v{S}, v{S+1}",
      "s_waitcnt lgkmcnt(0)",
      "s_barrier")

    def qk1(i, j, b):
        return f"v_mfma_f32_32x32x16_bf16 {vr(S+16*b,16)}, {vr(K16+4*j,4)}, {vr(Q16+4*(i&1),4)}, 0"

    def qk2(j, b):
        return f"v_mfma_f32_32x32x8bf16_1k {vr(S+16*b,16)}, {vr(K4+2*(j//2),2)}, {vr(Q4+2*(j&1),2)}, {vr(S+16*b,16)}"

    def pv(j, b, hf, zero=False):
        c = "0" if zero else vr(O, 16)
        return f"v_mfma_f32_32x32x16_bf16 {vr(O,16)}, {vr(V+8*j+4*hf,4)}, {vr(S+16*b+8*hf,4)}, {c}"

    def e(b, i):
        return f"v_exp_f32 v{S+16*b+i}, v{S+16*b+i}"

    def cv(b, i):
        return f"v_cvt_pk_bf16_f32 v{S+16*b+8*(i//4)+i%4}, v{S+16*b+2*i}, v{S+16*b+2*i+1}"

    slow = []

    def slot_addr(add):
        a(f"s_add_u32 s47, s{sW}, {add}",
          f"s_and_b32 s47, s47, 7",
          f"s_mul_i32 s48, s47, {AT_QT}",
          f"s_add_u32 s48, s48, {RED}",
          f"s_lshl_b32 s47, s47, 2",
          f"s_add_u32 s47, s47, {CNT}",
          f"v_add_u32 v{vX}, s48, v{vA8}",
          f"v_mov_b32 v{vP}, s47")

    def poll_check(b, want):
        a("s_waitcnt lgkmcnt(0)",
          f"v_readfirstlane_b32 s49, v{vP}",
          f"s_cmp_ge_u32 s49, {want}",
          f"s_cbranch_scc0 {pfx}_slow{b}")
        a(f"{pfx}_back{b}:")
        slow.extend([f"{pfx}_slow{b}:",
                     "s_sleep 1",
                     f"v_mov_b32 v{vP}, s47",
                     f"ds_read_b32 v{vP}, v{vP}",
                     "s_waitcnt lgkmcnt(0)",
                     f"v_readfirstlane_b32 s49, v{vP}",
                     f"s_cmp_ge_u32 s49, {want}",
                     f"s_cbranch_scc0 {pfx}_slow{b}",
                     f"s_branch {pfx}_back{b}"])

    def boundary(b):
        if b >= 2:
            poll_check(b, b - 1)
        for k in range(3):
            if b == 1:
                a(f"ds_write2st64_b64 v{vX}, {vr(O+4*k,2)}, {vr(O+4*k+2,2)} offset0:{2*k} offset1:{2*k+1}")
            else:
                a(f"ds_wrxchg2st64_rtn_b64 {vr(O+4*k,4)}, v{vX}, {vr(O+4*k,2)}, {vr(O+4*k+2,2)} offset0:{2*k} offset1:{2*k+1}")
        a(f"v_mov_b32 v{vP}, s47", f"v_mov_b32 v{vX}, {b}", f"ds_write_b32 v{vP}, v{vX}")

    G = Q16
    a.wait_vm(("k", 0))
    a(qk1(0, 0, 0), qk2(0, 0))
    for i in range(8):
        for j in range(8):
            b = j & 1
            last = (i == 7 and j == 7)
            ni, nj = (i, j + 1) if j < 7 else (i + 1, 0)
            a(e(b, 0), e(b, 1))
            if not (i == 0 and j == 0):
                a(pv((j - 1) % 8, b ^ 1, 1))
            a(e(b, 2), e(b, 3))
            if not last:
                if i == 0 and nj > 0:
                    a.wait_vm(("k", nj))
                if nj == 0:
                    a.wait_vm(("q16", ni))
                a(qk1(ni, nj, b ^ 1))
            a(e(b, 4), e(b, 5), cv(b, 0), e(b, 6), e(b, 7), cv(b, 1))
            if not last:
                if ni > 0 and nj < 2:
                    a.wait_vm(("q4", ni, nj))
                a(qk2(nj, b ^ 1))
            a(e(b, 8), cv(b, 2))
            if j == 0 and i > 0:
                boundary(i)
            if j == 1 and i < 7:
                q_off(i + 1, SQ)
                load_q16(i + 1)
            if j == 1 and i == 7:
                a(f"s_add_u32 s44, s{sW}, 7",
                  f"s_and_b32 s44, s44, 7",
                  f"s_lshr_b32 s45, s44, 2",
                  f"s_and_b32 s44, s44, 3",
                  f"s_lshl_b32 s50, s{sR}, 1",
                  f"s_add_u32 s45, s45, s50",
                  f"s_lshl_b32 s50, s45, 7",
                  f"s_add_u32 s50, s50, {GG}",
                  f"v_lshrrev_b32 v{G}, 1, v{vA8}",
                  f"v_and_b32 v{G}, 127, v{G}")
                a.vmem(f"buffer_load_dword v{G}, v{G}, {sr(SWS,4)}, s50 offen", "g")
                a(f"s_mul_i32 s45, s45, {NKS}",
                  f"s_mul_i32 s50, s{sC}, 5",
                  f"s_add_u32 s45, s45, s50",
                  f"s_lshl_b32 s45, s45, 10",
                  f"s_add_u32 s45, s45, {AF}",
                  f"s_lshl_b32 s50, s44, 10",
                  f"s_add_u32 s50, s50, s45",
                  f"s_lshr_b32 s51, s44, 1",
                  f"s_lshl_b32 s51, s51, 9",
                  f"s_and_b32 s44, s44, 1",
                  f"s_lshl_b32 s44, s44, 3",
                  f"s_add_u32 s51, s51, s44",
                  f"s_add_u32 s51, s51, s45",
                  f"s_add_u32 s51, s51, 4096")
            if i < 7 and j == 5:
                load_q4(i + 1, 0)
            if i < 7 and j == 6:
                load_q4(i + 1, 1)
            if j == 7:
                slot_addr(2 * (i + 1) if i < 7 else 7)
                if i >= 1:
                    a(f"ds_read_b32 v{vP}, v{vP}")
            a(cv(b, 3), e(b, 9), e(b, 10), e(b, 11))
            if i == 0:
                a.wait_vm(("v", j))
            late = (j == 0 and i >= 2)
            if not late:
                a(pv(j, b, 0, zero=(j == 0)))
            a(e(b, 12), e(b, 13), cv(b, 4), e(b, 14), e(b, 15), cv(b, 5), cv(b, 6), cv(b, 7))
            if late:
                a("s_waitcnt lgkmcnt(1)", pv(j, b, 0))
    a(pv(7, 1, 1))
    T = S
    poll_check(8, 7)
    for k in range(3):
        a(f"ds_read2st64_b64 {vr(T+4*k,4)}, v{vX} offset0:{2*k} offset1:{2*k+1}")
    a("s_mov_b32 s56, 0",
      f"s_mov_b32 s52, {f32(2.0**-64)}",
      f"s_mov_b32 s53, {f32(2.0**64)}",
      f"s_mov_b32 s54, {f32(2.0**120)}",
      "s_waitcnt vmcnt(0) lgkmcnt(0)")
    for k in range(12):
        a(f"v_add_f32 v{O+k}, v{O+k}, v{T+k}")
    a(f"{pfx}_norm:")
    a(f"v_mov_b32 v{T}, v{O+8}",
      f"v_mov_b32 v{T+1}, v{O+8}",
      f"v_max3_f32 v{T+2}, |v{O}|, |v{O+1}|, |v{O+2}|",
      f"v_max3_f32 v{T+3}, |v{O+3}|, |v{O+4}|, |v{O+5}|",
      f"v_permlane32_swap_b32 v{T}, v{T+1}",
      f"v_max3_f32 v{T+2}, |v{O+6}|, |v{O+7}|, v{T+2}",
      f"v_max3_f32 v{T+3}, |v{O+8}|, |v{O+9}|, v{T+3}",
      f"v_rcp_f32 v{T}, v{T+1}",
      f"v_max3_f32 v{T+2}, |v{O+10}|, |v{O+11}|, v{T+2}",
      f"v_max_f32 v{T+2}, v{T+2}, v{T+3}",
      f"v_cmp_nle_f32 s[58:59], s52, v{T+1}",
      f"v_cmp_nge_f32 s[60:61], s53, v{T+1}",
      f"v_cmp_nge_f32 s[62:63], s54, v{T+2}",
      f"v_mul_f32 v{T}, v{T}, v{G}",
      f"s_or_b64 s[58:59], s[58:59], s[60:61]",
      f"s_or_b64 s[58:59], s[58:59], s[62:63]")
    if force_fallback:
        a("s_mov_b64 s[58:59], -1")
    a(f"s_cmp_lg_u32 s56, 0",
      f"s_cselect_b64 s[58:59], 0, s[58:59]",
      f"s_cmp_lg_u64 s[58:59], 0",
      f"s_cbranch_scc1 {pfx}_fb")
    for k in range(12):
        a(f"v_mul_f32 v{O+k}, v{O+k}, v{T}")
    for k in range(6):
        a(f"v_cvt_pk_bf16_f32 v{O+k}, v{O+2*k}, v{O+2*k+1}")
    a(f"buffer_store_dwordx4 {vr(O,4)}, v{vA16}, {sr(SWS,4)}, s50 offen",
      "s_mov_b32 exec_hi, 0",
      f"buffer_store_dwordx2 {vr(O+4,2)}, v{vA16}, {sr(SWS,4)}, s51 offen",
      "s_endpgm")
    a(*slow)
    M = Q16 + 1
    a(f"{pfx}_fb:")
    a("s_mov_b32 s56, 1",
      "s_mov_b32 s57, 0",
      f"v_mov_b32 v{M}, 0xff800000")
    for i in range(16):
        a(f"v_mov_b32 v{O+i}, 0")
    a(f"{pfx}_fb_pass:")
    a(f"s_mov_b32 s41, {KF}", f"s_mov_b32 s42, {KF2}", f"s_mov_b32 s43, {VF}")
    a(f"{pfx}_fb_g:")
    for j in range(8):
        load_k(j)
        load_v(j)
    a("s_add_u32 s41, s41, 4096",
      "s_add_u32 s42, s42, 2048",
      "s_add_u32 s43, s43, 4096",
      "s_waitcnt vmcnt(0)",
      "s_cmp_eq_u32 s57, 0",
      f"s_cbranch_scc0 {pfx}_fb_p2")
    for j in range(8):
        a(qk1(1, j, 0), qk2(j, 0))
        for k in range(8):
            a(f"v_max3_f32 v{M}, v{S+2*k}, v{S+2*k+1}, v{M}")
    a(f"s_branch {pfx}_fb_next")
    a(f"{pfx}_fb_p2:")
    for j in range(8):
        a(qk1(1, j, 0), qk2(j, 0))
        for k in range(16):
            a(f"v_sub_f32 v{S+k}, v{S+k}, v{M}")
        for k in range(16):
            a(e(0, k))
        for k in range(8):
            a(cv(0, k))
        a(pv(j, 0, 0), pv(j, 0, 1))
    a(f"{pfx}_fb_next:")
    a("s_nop 15",
      f"s_cmp_lt_u32 s41, {KF + 65536}",
      f"s_cbranch_scc1 {pfx}_fb_g",
      "s_cmp_eq_u32 s57, 0",
      f"s_cbranch_scc0 {pfx}_norm",
      f"v_mov_b32 v{M+1}, v{M}",
      f"v_permlane32_swap_b32 v{M}, v{M+1}",
      f"v_max_f32 v{M}, v{M}, v{M+1}",
      "s_mov_b32 s57, 1",
      f"s_branch {pfx}_fb_pass")


def gen_k2b(force_fallback=False):
    a = Asm()
    header(a, "k2b_kernel")
    sR, sC, sW = 16, 17, 18
    rc_decode(a, sR, sC, 40, 41, "K2B_done")
    a("s_load_dwordx2 s[14:15], s[0:1], 96",
      "v_lshrrev_b32 v2, 6, v0",
      f"v_readfirstlane_b32 s{sW}, v2",
      "s_waitcnt lgkmcnt(0)")
    srd(a, 32, 14, WS_SIZE)
    att_role(a, sR, sC, sW, 32, 0, 8 * AT_QT, "AT", force_fallback)
    a("K2B_done:")
    a("s_endpgm")
    return fix(a.lines), dict(name="k2b_kernel", grid=256, block=512, lds=8 * AT_QT + 64, vgpr=168, accum=168)


def gen_k2(force_fallback=False, prio=None):
    a = Asm()
    header(a, "k2_kernel")
    sR, sC, sW = 16, 17, 18
    RED = FU_LDS
    CNT = RED + 8 * AT_QT
    rc_decode(a, sR, sC, 40, 41, "K2_done")
    a("s_load_dwordx2 s[14:15], s[0:1], 96",
      "s_load_dwordx2 s[4:5], s[0:1], 0",
      "s_load_dwordx2 s[6:7], s[0:1], 32",
      "s_load_dwordx4 s[8:11], s[0:1], 48",
      "s_load_dwordx2 s[12:13], s[0:1], 64",
      "v_lshrrev_b32 v2, 6, v0",
      "v_and_b32 v1, 63, v0",
      f"v_readfirstlane_b32 s{sW}, v2",
      "s_waitcnt lgkmcnt(0)")
    srd(a, 32, 14, WS_SIZE)
    a(f"s_cmp_ge_u32 s{sW}, 8", "s_cbranch_scc1 K2_g")
    att_role(a, sR, sC, sW, 32, RED, CNT, "AT", force_fallback)
    a("K2_g:")
    a(f"s_sub_u32 s{sW}, s{sW}, 8")
    if prio is not None:
        a(f"s_setprio {prio}")
    ffn_role(a, sR, sC, sW, 1, dict(x=4, wo=6, wg=8, wu=10, wd=12, SWS=32), xcnt=CNT + 32)
    a("K2_done:")
    a("s_endpgm")
    return fix(a.lines), dict(name="k2_kernel", grid=256, block=768, lds=CNT + 64, vgpr=168, accum=168)


def gen_k3():
    a = Asm()
    header(a, "k3_kernel")
    sR, sC, sW = 16, 17, 18
    SA, SW_, SO = 20, 24, 28
    D = 12
    rc_decode(a, sR, sC, 40, 41, "K3_done")
    a("s_load_dwordx2 s[12:13], s[0:1], 80",
      "s_load_dwordx2 s[14:15], s[0:1], 96",
      "v_lshrrev_b32 v2, 6, v0",
      "v_and_b32 v1, 63, v0",
      f"v_readfirstlane_b32 s{sW}, v2",
      "v_lshlrev_b32 v2, 4, v1",
      f"v_add_u32 v3, {NKS*1024}, v2",
      f"v_lshrrev_b32 v4, 5, v1",
      f"v_lshlrev_b32 v4, 8, v4",
      f"v_and_b32 v5, 15, v1",
      f"v_lshl_add_u32 v4, v5, 4, v4",
      f"v_and_b32 v5, 16, v1",
      f"v_lshlrev_b32 v5, 27, v5",
      f"v_or_b32 v4, v4, v5",
      f"s_mul_i32 s40, s{sR}, {2*NKS*1024}",
      f"s_mul_i32 s41, s{sW}, {34*1024}",
      f"s_add_u32 s40, s40, s41",
      f"s_add_u32 s40, s40, {AF}",
      f"s_mul_i32 s41, s{sC}, {NKS*2560}",
      f"s_mul_i32 s42, s{sW}, {34*2560}",
      f"s_add_u32 s41, s41, s42",
      f"s_add_u32 s41, s41, {WF}",
      f"s_mul_i32 s42, s{sR}, {64*1280}",
      f"s_mul_i32 s43, s{sC}, 160",
      f"s_add_u32 s42, s42, s43",
      f"s_sub_u32 s43, {2048*1280}, s42",
      "s_waitcnt lgkmcnt(0)")
    srd(a, SA, 14, (NKS + 34) * 1024, off=40)
    srd(a, SW_, 14, 34 * 2560, off=41)
    srd(a, SO, 12, "s43", off=42)
    vB = 8

    def loads(k):
        f = vB + 20 * (k % D)
        a(f"s_mov_b32 s44, {k*1024}", f"s_mov_b32 s45, {k*2560}")
        a.vmem(f"buffer_load_dwordx4 {vr(f,4)}, v2, {sr(SA,4)}, s44 offen", k)
        a.vmem(f"buffer_load_dwordx4 {vr(f+8,4)}, v2, {sr(SW_,4)}, s45 offen", k)
        a.vmem(f"buffer_load_dwordx4 {vr(f+4,4)}, v3, {sr(SA,4)}, s44 offen", k)
        a.vmem(f"buffer_load_dwordx4 {vr(f+12,4)}, v2, {sr(SW_,4)}, s45 offen offset:1024", k)
        a.vmem(f"buffer_load_dwordx4 {vr(f+16,4)}, v4, {sr(SW_,4)}, s45 offen offset:2048", k)
    for k in range(D):
        loads(k)
    for k in range(34):
        a.wait_vm(k)
        f = vB + 20 * (k % D)
        for ti in range(3):
            for tt in range(2):
                acc = f"a[{16*(3*tt+ti)}:{16*(3*tt+ti)+15}]"
                c = "0" if k == 0 else acc
                a(f"v_mfma_f32_32x32x16_bf16 {acc}, {vr(f+8+4*ti,4)}, {vr(f+4*tt,4)}, {c}")
        if k + D < 34:
            loads(k + D)
    quads = []
    for tt in range(2):
        for ti in range(3):
            for q in range(4 if ti < 2 else 2):
                quads.append((tt, ti, q))
    a(f"s_mul_i32 s40, s{sW}, {20*1024}",
      f"v_add_u32 v5, s40, v2",
      f"s_mul_i32 s40, s{sW}, {5*1024}",
      f"v_add_u32 v6, s40, v2")
    for qd, (tt, ti, q) in enumerate(quads):
        r0 = 16 * (3 * tt + ti) + 4 * q
        a(f"ds_write_b128 v5, a[{r0}:{r0+3}] offset:{qd*1024}")
    a(f"v_and_b32 v7, 31, v1",
      f"v_mul_u32_u24 v7, 1280, v7",
      f"v_lshrrev_b32 v3, 5, v1",
      f"v_lshl_add_u32 v7, v3, 3, v7",
      f"s_lshr_b32 s40, s{sW}, 1",
      f"s_mul_i32 s40, s40, {32*1280}",
      f"s_and_b32 s41, s{sW}, 1",
      f"s_mul_i32 s41, s41, 80",
      f"s_add_u32 s40, s40, s41",
      "s_waitcnt lgkmcnt(0)",
      "s_barrier")
    for i in range(5):
        for src in range(4):
            off = src * 20 * 1024 + i * 1024
            if off > 65535 - 0:
                pass
    a(f"v_add_u32 v5, {2*20*1024}, v6")
    for i in range(5):
        for src in range(4):
            base = 6 if src < 2 else 5
            a(f"ds_read_b128 {vr(vB+16*i+4*src,4)}, v{base} offset:{(src%2)*20*1024 + i*1024}")
    for i in range(5):
        f = vB + 16 * i
        a(f"s_waitcnt lgkmcnt({min(15, 16-4*i)})")
        for k in range(4):
            a(f"v_add_f32 v{f+k}, v{f+k}, v{f+4+k}",
              f"v_add_f32 v{f+8+k}, v{f+8+k}, v{f+12+k}")
        for k in range(4):
            a(f"v_add_f32 v{f+k}, v{f+k}, v{f+8+k}")
        a(f"v_cvt_pk_bf16_f32 v{f}, v{f}, v{f+1}",
          f"v_cvt_pk_bf16_f32 v{f+1}, v{f+2}, v{f+3}",
          f"buffer_store_dwordx2 {vr(f,2)}, v7, {sr(SO,4)}, s40 offen offset:{16*i}")
    a("K3_done:")
    a("s_endpgm")
    return fix(a.lines), dict(name="k3_kernel", grid=256, block=256, lds=80 * 1024, vgpr=352, accum=256)


def build(kernels):
    ref = open(f"cdna_kernels/{NAME}.s.ref").read().split("\n")
    head = [l for l in ref if l.startswith(";   offset") or l.startswith("; Kernarg")]
    out = list(head)
    for _, m in kernels:
        out.append(f"; @launch kernel={m['name']} grid=({m['grid']},1,1) block=({m['block']},1,1) lds={m['lds']}")
    out.append('.amdgcn_target "amdgcn-amd-amdhsa--gfx950"')
    out.append(".text")
    for l, _ in kernels:
        out += l
    out.append('.section .rodata,"a"')
    for _, m in kernels:
        out += [".p2align 6",
                f".amdhsa_kernel {m['name']}",
                f"  .amdhsa_next_free_vgpr {m['vgpr']}",
                "  .amdhsa_next_free_sgpr 96",
                f"  .amdhsa_accum_offset {m['accum']}",
                "  .amdhsa_group_segment_fixed_size 0",
                "  .amdhsa_kernarg_size 104",
                "  .amdhsa_user_sgpr_count 2",
                "  .amdhsa_user_sgpr_kernarg_segment_ptr 1",
                "  .amdhsa_system_sgpr_workgroup_id_x 1",
                ".end_amdhsa_kernel"]
    return "\n".join(out) + "\n"


if __name__ == "__main__":
    ff = "--fallback" in sys.argv
    outp = [x for x in sys.argv[1:] if not x.startswith("--")]
    outp = outp[0] if outp else f"cdna_kernels/{NAME}.s"
    if "--split" in sys.argv:
        txt = build([gen_k1(), gen_k2a(), gen_k2b(ff), gen_k3()])
    else:
        prio = [int(x[7:]) for x in sys.argv if x.startswith("--prio=")]
        txt = build([gen_k1(), gen_k2(ff, prio[0] if prio else None), gen_k3()])
    open(outp, "w").write(txt)
    print("wrote", outp, len(txt), "bytes")
```

```python
import re

TRANS = ("v_exp_", "v_log_", "v_rcp_", "v_rsq_", "v_sqrt_", "v_sin_", "v_cos_")


def vr(a, n=1):
    return f"v{a}" if n == 1 else f"v[{a}:{a+n-1}]"


def sr(a, n=1):
    return f"s{a}" if n == 1 else f"s[{a}:{a+n-1}]"


def _regs(tok):
    tok = tok.strip()
    tok = re.sub(r"^(neg|abs)\((.*)\)$", r"\2", tok)
    tok = tok.strip("-|")
    m = re.fullmatch(r"([vas])(\d+)", tok)
    if m:
        return {(m.group(1), int(m.group(2)))}
    m = re.fullmatch(r"([vas])\[(\d+):(\d+)\]", tok)
    if m:
        return {(m.group(1), i) for i in range(int(m.group(2)), int(m.group(3)) + 1)}
    if tok == "vcc":
        return {("s", 106), ("s", 107)}
    if tok == "vcc_lo":
        return {("s", 106)}
    if tok == "vcc_hi":
        return {("s", 107)}
    if tok == "m0":
        return {("m", 0)}
    if tok == "exec":
        return {("e", 0), ("e", 1)}
    if tok == "exec_lo":
        return {("e", 0)}
    if tok == "exec_hi":
        return {("e", 1)}
    return set()


class Ins:
    def __init__(self, text):
        self.text = text
        t = text.split(";")[0].strip()
        self.label = None
        self.mn = None
        self.ops = []
        self.mods = ""
        if not t or t.startswith("."):
            self.kind = "none"
            return
        if t.endswith(":"):
            self.kind = "label"
            self.label = t[:-1]
            return
        parts = t.split(None, 1)
        self.mn = mn = parts[0]
        rest = parts[1] if len(parts) > 1 else ""
        ops = [o.strip() for o in rest.split(",")] if rest else []
        if ops:
            last = ops[-1].split(None, 1)
            if last:
                ops[-1] = last[0]
                self.mods = last[1] if len(last) > 1 else ""
        self.ops = ops
        R = [_regs(o) for o in ops]
        U = lambda l: set().union(*l) if l else set()
        self.w = set()
        self.r = set()
        self.states = 1
        self.passes = 0
        if mn == "s_nop":
            self.kind = "nop"
            self.states = int(ops[0], 0) + 1
        elif mn.startswith("v_mfma"):
            self.kind = "mfma"
            self.w = R[0]
            self.ab = R[1] | R[2]
            self.c = R[3]
            self.r = self.ab | self.c
            if "32x32x4" in mn or "_2b" in mn:
                self.passes = 16
            elif "32x32" in mn:
                self.passes = 8
            elif "16x16" in mn:
                self.passes = 4
            else:
                raise ValueError(mn)
        elif mn.startswith("v_"):
            self.kind = "valu"
            if mn.startswith("v_cmpx"):
                raise ValueError("no cmpx")
            if mn.startswith(("v_add_co", "v_sub_co", "v_subrev_co", "v_addc_co", "v_subb_co", "v_div_scale", "v_mad_u64")):
                self.w = R[0] | R[1]
                self.r = U(R[2:])
            elif mn.startswith(("v_permlane", "v_swap")):
                self.w = R[0] | R[1]
                self.r = R[0] | R[1]
            elif mn.startswith(("v_fmac", "v_mac", "v_dot2c", "v_writelane", "v_pk_fmac")):
                self.w = R[0]
                self.r = U(R)
            elif mn == "v_nop":
                pass
            else:
                self.w = R[0]
                self.r = U(R[1:])
                if mn.startswith("v_cndmask") and len(ops) == 3:
                    self.r |= _regs("vcc")
                if "dst_unused:UNUSED_PRESERVE" in self.mods or "op_sel" in self.mods and ("f16" in mn or "mix" in mn):
                    self.r |= R[0]
            self.trans = mn.startswith(TRANS)
            self.dpp = any(k in self.mods for k in ("row_", "quad_perm", "wave_", "row_bcast"))
        elif mn.startswith(("buffer_", "global_", "flat_")):
            self.kind = "vmem"
            lds = (" lds" in " " + self.mods) or "_lds_" in mn
            self.lds = lds
            self.data = set()
            if mn in ("buffer_inv", "buffer_wbl2"):
                pass
            elif "load" in mn and not lds:
                self.w = R[0]
                self.r = U(R[1:])
                if "d16" in mn:
                    self.r |= R[0]
            elif lds:
                self.r = U(R) | {("m", 0)}
            else:
                self.r = U(R)
                if mn.startswith("buffer_"):
                    self.data = R[0]
                    if "atomic" in mn and "sc0" in self.mods:
                        self.w = R[0]
                else:
                    if "atomic" in mn and len(ops) == 4:
                        self.w = R[0]
                        self.r = U(R[1:])
                        self.data = R[2]
                    else:
                        self.data = R[1]
            self.wide = ("x3" in mn or "x4" in mn) and "store" in mn
        elif mn.startswith("ds_"):
            self.kind = "ds"
            if mn.startswith(("ds_read", "ds_bpermute", "ds_permute", "ds_swizzle")) or "_rtn" in mn:
                self.w = R[0]
                self.r = U(R[1:])
            else:
                self.r = U(R)
        elif mn.startswith("s_"):
            self.kind = "salu"
            if mn.startswith(("s_cmp", "s_cbranch", "s_branch", "s_waitcnt", "s_barrier", "s_endpgm", "s_setprio", "s_sleep", "s_bitcmp")):
                self.r = U(R)
            else:
                self.w = R[0] if R else set()
                self.r = U(R[1:])
                if "saveexec" in mn:
                    self.w |= _regs("exec")
        else:
            raise ValueError("unknown instruction: " + text)


MF_AB = {4: 8, 8: 12, 16: 20}
MF_C = {4: 6, 8: 10, 16: 18}
MF_WAR = {4: 3, 8: 7, 16: 15}


def need(p, c):
    n = 0
    if p.kind == "valu":
        vw = {x for x in p.w if x[0] in "va"}
        sw = {x for x in p.w if x[0] == "s"}
        if c.kind == "mfma" and vw & c.r:
            n = max(n, 2)
        if c.kind == "valu":
            if p.trans and vw & c.r and not c.trans:
                n = max(n, 1)
            if p.trans and vw & (c.r | c.w):
                n = max(n, 1)
            if sw & c.r:
                n = max(n, 4 if c.mn.startswith(("v_readlane", "v_writelane")) else 2)
            if vw & c.r:
                if c.mn.startswith(("v_readlane", "v_readfirstlane")):
                    n = max(n, 1)
                if c.mn.startswith("v_permlane") or c.dpp:
                    n = max(n, 2)
                if "op_sel" in p.mods or "sdwa" in p.mn or "dst_sel" in p.mods:
                    n = max(n, 1)
        if c.kind in ("vmem",) and sw & c.r:
            n = max(n, 5)
        if c.kind in ("vmem", "ds") and p.trans and vw & c.r:
            n = max(n, 1)
    elif p.kind == "mfma":
        if c.kind == "mfma":
            if p.w & c.ab:
                n = max(n, MF_AB[p.passes])
            if p.w & c.c and not (p.w == c.c and p.passes == c.passes):
                n = max(n, MF_C[p.passes])
            if p.w & c.w and not (p.w == c.w and p.passes == c.passes):
                n = max(n, MF_C[p.passes])
        elif c.kind in ("valu", "vmem", "ds"):
            if p.w & (c.r | c.w):
                n = max(n, MF_AB[p.passes])
            if p.c & c.w:
                n = max(n, MF_WAR[p.passes])
    elif p.kind == "vmem":
        if p.wide and p.data & c.w:
            n = max(n, 2)
    elif p.kind == "salu":
        if ("m", 0) in p.w and c.kind == "vmem" and c.lds:
            n = max(n, 1)
        if ("m", 0) in p.w and c.kind == "ds" and "addtid" in c.mn:
            n = max(n, 1)
    return n


WINDOW = 24


def _required(hist, c):
    age = 0
    extra = 0
    for p in reversed(hist):
        if p.kind in ("none", "label"):
            continue
        k = need(p, c) - age
        if k > extra:
            extra = k
        age += p.states
        if age > WINDOW:
            break
    return extra


def _nops(n):
    out = []
    while n > 0:
        k = min(n, 16)
        out.append(Ins(f"    s_nop {k-1}"))
        n -= k
    return out


def fix(lines, verbose=False):
    ins = [Ins(l) for l in lines]
    out = []
    added = 0
    for c in ins:
        if c.kind not in ("none", "label", "nop"):
            e = _required(out[-60:], c)
            if e > 0:
                out += _nops(e)
                added += e
        if c.kind == "salu" and c.mn in ("s_endpgm",):
            pass
        out.append(c)
    changed = True
    while changed:
        changed = False
        labels = {c.label: i for i, c in enumerate(out) if c.kind == "label"}
        for i, c in enumerate(out):
            if c.kind == "salu" and c.mn.startswith(("s_cbranch", "s_branch")):
                tgt = labels[c.ops[0]]
                hist = out[max(0, i - 60): i + 1]
                base = len(hist)
                worst = 0
                st = 0
                for d in out[tgt: tgt + 60]:
                    if d.kind in ("none", "label"):
                        continue
                    if d.kind != "nop":
                        worst = max(worst, _required(hist, d))
                    hist = hist + [d]
                    st += d.states
                    if st > WINDOW or (d.kind == "salu" and d.mn in ("s_branch", "s_endpgm")):
                        break
                if worst > 0:
                    out[i:i] = _nops(worst)
                    added += worst
                    changed = True
                    break
    if verbose:
        print("wait states added:", added)
    return [c.text for c in out]


class Asm:
    def __init__(self):
        self.lines = []
        self.vm = []

    def __call__(self, s, *more):
        for x in (s,) + more:
            for l in x.split("\n"):
                l = l.rstrip()
                if not l.strip():
                    continue
                if l.strip().endswith(":") or l.strip().startswith((".", ";")):
                    self.lines.append(l.strip())
                else:
                    self.lines.append("    " + l.strip())

    def vmem(self, s, tag=None):
        self(s)
        self.vm.append(tag)

    def wait_vm(self, tag, extra=""):
        idx = max(i for i, t in enumerate(self.vm) if t == tag)
        n = len(self.vm) - 1 - idx
        assert n <= 63, n
        self(f"s_waitcnt vmcnt({n}){extra}")

    def reset_vm(self):
        self.vm = []

    prof = False
    kid = 0

    def prof_init(self, kid):
        self.kid = kid
        if self.prof:
            self("s_memrealtime s[64:65]", "v_lshrrev_b32 v1, 6, v0", "v_readfirstlane_b32 s19, v1")
            for k in range(1, 14):
                self(f"s_mov_b32 s{64+2*k}, 0")
            self("s_memtime s[86:87]")

    def stamp(self, k):
        if self.prof:
            self(f"s_memrealtime s[{64+2*k}:{65+2*k}]", "s_waitcnt lgkmcnt(0)")

    def endpgm(self):
        if self.prof:
            self("s_waitcnt vmcnt(0)", "s_memrealtime s[90:91]", "s_memtime s[88:89]", "s_mov_b64 exec, -1",
                 "s_mov_b32 s92, s14", "s_mov_b32 s93, s15", "s_mov_b32 s94, 0x1400000", "s_mov_b32 s95, 0x00020000",
                 "v_mov_b32 v4, 0", "v_mbcnt_lo_u32_b32 v5, -1, 0", "v_lshlrev_b32 v5, 2, v5",
                 "s_lshl_b32 s65, s2, 4", "s_add_u32 s65, s65, s19", "s_lshl_b32 s65, s65, 6",
                 f"s_add_u32 s65, s65, {0x1000000 + self.kid * 0x40000}",
                 "s_getreg_b32 s67, hwreg(HW_REG_XCC_ID)",
                 "s_getreg_b32 s69, hwreg(HW_REG_HW_ID)",
                 "s_waitcnt lgkmcnt(0)")
            for k in range(14):
                self(f"v_writelane_b32 v4, s{64+2*k}, {k}")
            self("v_writelane_b32 v4, s67, 14", "v_writelane_b32 v4, s69, 15")
            self("s_mov_b64 exec, 0xffff", "buffer_store_dword v4, v5, s[92:95], s65 offen")
        self("s_endpgm")
```

```python
import math
from asmlib import Asm, fix, vr, sr
from gen3 import QF, KF, KF2, VF, GG, HF, OF, WS_SIZE, OPT, f32, header, srd

AT_QT = 3072
GREG = 25600
RED = 4 * GREG
XB = RED + 8 * AT_QT
CNT = XB + 20480
K2_LDS = CNT + 256
DONE = CNT + 32
FL1 = CNT + 40
FL2 = CNT + 48


def att_role(a, sR, sC, sW, SWS, pfx, force_fallback=False):
    vP, vA16, vA8, vX = 0, 1, 2, 3
    K16, K4, V, S, O, Q16, Q4 = 4, 36, 44, 108, 140, 156, 164
    sM = 38
    PRE = int(OPT.get("kvpre", 3))
    a.reset_vm()

    def v_addr():
        a(f"v_lshrrev_b32 v{vX}, 9, v{vA16}",
          f"v_mul_u32_u24 v{vX}, 192, v{vX}",
          f"v_sub_u32 v{vX}, v{vA16}, v{vX}")

    def q_off(i, d):
        a(f"s_add_u32 s44, s{sW}, {i}",
          f"s_and_b32 s44, s44, 7",
          f"s_lshr_b32 s{d}, s44, 2",
          f"s_mul_i32 s{d}, s{d}, {28*1280}",
          f"s_mul_i32 s44, s44, 1280",
          f"s_add_u32 s{d}, s{d}, s44",
          f"s_add_u32 s{d}, s{d}, s40")

    SQ = 46
    a(f"v_and_b32 v{S}, 63, v0",
      f"v_lshlrev_b32 v{vA16}, 4, v{S}",
      f"v_lshlrev_b32 v{vA8}, 3, v{S}",
      f"s_lshl_b32 s40, s{sR}, 6",
      f"s_lshl_b32 s41, s{sC}, 2",
      f"s_add_u32 s40, s40, s41",
      f"s_mul_i32 s40, s40, 1280",
      f"s_lshl_b32 s41, s{sW}, 13",
      f"s_add_u32 s41, s41, {KF}",
      f"s_lshl_b32 s42, s{sW}, 11",
      f"s_add_u32 s42, s42, {KF2}",
      f"s_mul_i32 s43, s{sW}, 10240",
      f"s_add_u32 s43, s43, {VF}",
      f"s_mov_b32 s{sM}, 0x000fffff",
      f"s_mov_b32 s{sM+1}, 0x000fffff")
    v_addr()
    q_off(0, SQ)
    for i in range(4):
        a(f"v_mov_b32 v{Q4+i}, 0")
    a(f"v_and_b32 v{S}, 31, v{S}",
      f"v_cmp_eq_u32 vcc, 20, v{S}",
      f"v_mov_b32 v{S+1}, 0x3f803f80",
      f"v_cndmask_b32 v{S}, 0, v{S+1}, vcc",
      "s_waitcnt lgkmcnt(0)")
    srd(a, SWS, 14, WS_SIZE)

    def load_q16(i):
        a.vmem(f"buffer_load_dwordx4 {vr(Q16+4*(i&1),4)}, v{vA16}, {sr(SWS,4)}, s{SQ} offen", ("q16", i))

    def load_q4(i, hf):
        a("s_mov_b32 exec_hi, 0" if hf == 0 else "s_mov_b32 exec_lo, 0")
        a.vmem(f"buffer_load_dwordx2 {vr(Q4+2*hf,2)}, v{vA8}, {sr(SWS,4)}, s{SQ} offen offset:{1024-256*hf}", ("q4", i, hf))
        a("s_mov_b32 exec_hi, -1" if hf == 0 else "s_mov_b32 exec_lo, -1")

    def load_k(j):
        if j == 4:
            a("s_add_u32 s41, s41, 4096")
        a.vmem(f"buffer_load_dwordx4 {vr(K16+4*j,4)}, v{vA16}, {sr(SWS,4)}, s41 offen offset:{1024*(j%4)}", ("k", j))
        if j % 2 == 0:
            a.vmem(f"buffer_load_dwordx2 {vr(K4+j,2)}, v{vA8}, {sr(SWS,4)}, s42 offen offset:{256*j}", ("k", j))

    def load_v(j):
        if j and j % 3 == 0:
            a("s_add_u32 s43, s43, 3840")
        a(f"s_mov_b64 exec, {sr(sM,2)}")
        for hf in range(2):
            a.vmem(f"buffer_load_dwordx4 {vr(V+8*j+4*hf,4)}, v{vX}, {sr(SWS,4)}, s43 offen offset:{1280*(j%3)+640*hf}", ("v", j))
        a("s_mov_b64 exec, -1")

    def preset(j):
        for i in range(8):
            a(f"v_mov_b32 v{V+8*j+i}, v{S}")

    load_q16(0)
    load_k(0)
    load_q4(0, 0)
    load_q4(0, 1)
    for j in range(PRE):
        if j:
            load_k(j)
        preset(j)
        load_v(j)
    for j in range(PRE, 8):
        preset(j)
    a("s_barrier")
    if "aprio" in OPT:
        a(f"s_setprio {OPT['aprio']}")

    def qk1(i, j, b):
        return f"v_mfma_f32_32x32x16_bf16 {vr(S+16*b,16)}, {vr(K16+4*j,4)}, {vr(Q16+4*(i&1),4)}, 0"

    def qk2(j, b):
        return f"v_mfma_f32_32x32x8bf16_1k {vr(S+16*b,16)}, {vr(K4+2*(j//2),2)}, {vr(Q4+2*(j&1),2)}, {vr(S+16*b,16)}"

    def pv(j, b, hf, zero=False):
        c = "0" if zero else vr(O, 16)
        return f"v_mfma_f32_32x32x16_bf16 {vr(O,16)}, {vr(V+8*j+4*hf,4)}, {vr(S+16*b+8*hf,4)}, {c}"

    def e(b, i):
        return f"v_exp_f32 v{S+16*b+i}, v{S+16*b+i}"

    def cv(b, i):
        return f"v_cvt_pk_bf16_f32 v{S+16*b+8*(i//4)+i%4}, v{S+16*b+2*i}, v{S+16*b+2*i+1}"

    slow = []

    def slot_addr(add):
        a(f"s_add_u32 s47, s{sW}, {add}",
          f"s_and_b32 s47, s47, 7",
          f"s_mul_i32 s48, s47, {AT_QT}",
          f"s_add_u32 s48, s48, {RED}",
          f"s_lshl_b32 s47, s47, 2",
          f"s_add_u32 s47, s47, {CNT}",
          f"v_add_u32 v{vX}, s48, v{vA8}",
          f"v_mov_b32 v{vP}, s47")

    def poll_check(b, want):
        a("s_waitcnt lgkmcnt(0)",
          f"v_readfirstlane_b32 s49, v{vP}",
          f"s_cmp_ge_u32 s49, {want}",
          f"s_cbranch_scc0 {pfx}_slow{b}")
        a(f"{pfx}_back{b}:")
        slow.extend([f"{pfx}_slow{b}:",
                     "s_sleep 1",
                     f"v_mov_b32 v{vP}, s47",
                     f"ds_read_b32 v{vP}, v{vP}",
                     "s_waitcnt lgkmcnt(0)",
                     f"v_readfirstlane_b32 s49, v{vP}",
                     f"s_cmp_ge_u32 s49, {want}",
                     f"s_cbranch_scc0 {pfx}_slow{b}",
                     f"s_branch {pfx}_back{b}"])

    def boundary(b):
        if b >= 2:
            poll_check(b, b - 1)
        for k in range(3):
            if b == 1:
                a(f"ds_write2st64_b64 v{vX}, {vr(O+4*k,2)}, {vr(O+4*k+2,2)} offset0:{2*k} offset1:{2*k+1}")
            else:
                a(f"ds_wrxchg2st64_rtn_b64 {vr(O+4*k,4)}, v{vX}, {vr(O+4*k,2)}, {vr(O+4*k+2,2)} offset0:{2*k} offset1:{2*k+1}")
        a(f"v_mov_b32 v{vP}, s47", f"v_mov_b32 v{vX}, {b}", f"ds_write_b32 v{vP}, v{vX}")

    G = Q16
    a.stamp(1)
    a.wait_vm(("q4", 0, 0))
    a.stamp(2)
    a(qk1(0, 0, 0), qk2(0, 0))
    for i in range(8):
        for j in range(8):
            b = j & 1
            last = (i == 7 and j == 7)
            ni, nj = (i, j + 1) if j < 7 else (i + 1, 0)
            a(e(b, 0), e(b, 1))
            if not (i == 0 and j == 0):
                a(pv((j - 1) % 8, b ^ 1, 1))
            a(e(b, 2), e(b, 3))
            if not last:
                if i == 0 and nj > 0:
                    a.wait_vm(("k", nj))
                if nj == 0:
                    a.wait_vm(("q16", ni))
                a(qk1(ni, nj, b ^ 1))
            a(e(b, 4), e(b, 5), cv(b, 0), e(b, 6), e(b, 7), cv(b, 1))
            if not last:
                if ni > 0 and nj < 2:
                    a.wait_vm(("q4", ni, nj))
                a(qk2(nj, b ^ 1))
            a(e(b, 8), cv(b, 2))
            if j == 0 and i > 0:
                boundary(i)
            if j == 1 and i > 0:
                a.stamp(2 + i)
            if i == 0 and j + PRE < 8:
                load_k(j + PRE)
                load_v(j + PRE)
            if j == (1 if i else max(1, 8 - PRE)) and i < 7:
                q_off(i + 1, SQ)
                load_q16(i + 1)
            if j == 1 and i == 7:
                a(f"s_add_u32 s44, s{sW}, 7",
                  f"s_and_b32 s44, s44, 7",
                  f"s_lshr_b32 s45, s44, 2",
                  f"s_and_b32 s44, s44, 3",
                  f"s_lshl_b32 s50, s{sR}, 1",
                  f"s_add_u32 s45, s45, s50",
                  f"s_lshl_b32 s50, s45, 7",
                  f"s_add_u32 s50, s50, {GG}",
                  f"v_lshrrev_b32 v{G}, 1, v{vA8}",
                  f"v_and_b32 v{G}, 127, v{G}")
                a.vmem(f"buffer_load_dword v{G}, v{G}, {sr(SWS,4)}, s50 offen", "g")
                a(f"s_mul_i32 s45, s45, 40",
                  f"s_mul_i32 s50, s{sC}, 5",
                  f"s_add_u32 s45, s45, s50",
                  f"s_lshl_b32 s45, s45, 10",
                  f"s_add_u32 s45, s45, {OF}",
                  f"s_lshl_b32 s50, s44, 10",
                  f"s_add_u32 s50, s50, s45",
                  f"s_lshl_b32 s51, s44, 8",
                  f"s_add_u32 s51, s51, s45",
                  f"s_add_u32 s51, s51, 4096",
                  f"v_mov_b32 v{G+2}, {DONE}",
                  f"v_mov_b32 v{G+3}, 1")
            if i < 7 and j == 5:
                load_q4(i + 1, 0)
            if i < 7 and j == 6:
                load_q4(i + 1, 1)
            if j == 7:
                slot_addr(2 * (i + 1) if i < 7 else 7)
                if i >= 1:
                    a(f"ds_read_b32 v{vP}, v{vP}")
            a(cv(b, 3), e(b, 9), e(b, 10), e(b, 11))
            if i == 0:
                a.wait_vm(("v", j))
            late = (j == 0 and i >= 2)
            if not late:
                a(pv(j, b, 0, zero=(j == 0)))
            a(e(b, 12), e(b, 13), cv(b, 4), e(b, 14), e(b, 15), cv(b, 5), cv(b, 6), cv(b, 7))
            if late:
                a("s_waitcnt lgkmcnt(1)", pv(j, b, 0))
    a(pv(7, 1, 1))
    T = S
    a.stamp(10)
    poll_check(8, 7)
    for k in range(3):
        a(f"ds_read2st64_b64 {vr(T+4*k,4)}, v{vX} offset0:{2*k} offset1:{2*k+1}")
    a("s_mov_b32 s56, 0",
      f"s_mov_b32 s52, {f32(2.0**-64)}",
      f"s_mov_b32 s53, {f32(2.0**64)}",
      f"s_mov_b32 s54, {f32(2.0**120)}",
      "s_mov_b32 s55, 0xfffffffe",
      "s_waitcnt vmcnt(0) lgkmcnt(0)")
    for k in range(12):
        a(f"v_add_f32 v{O+k}, v{O+k}, v{T+k}")
    a(f"{pfx}_norm:")
    a(f"v_mov_b32 v{T}, v{O+8}",
      f"v_mov_b32 v{T+1}, v{O+8}",
      f"v_max3_f32 v{T+2}, |v{O}|, |v{O+1}|, |v{O+2}|",
      f"v_max3_f32 v{T+3}, |v{O+3}|, |v{O+4}|, |v{O+5}|",
      f"v_permlane32_swap_b32 v{T}, v{T+1}",
      f"v_max3_f32 v{T+2}, |v{O+6}|, |v{O+7}|, v{T+2}",
      f"v_max3_f32 v{T+3}, |v{O+8}|, |v{O+9}|, v{T+3}",
      f"v_rcp_f32 v{T}, v{T+1}",
      f"v_max3_f32 v{T+2}, |v{O+10}|, |v{O+11}|, v{T+2}",
      f"v_max_f32 v{T+2}, v{T+2}, v{T+3}",
      f"v_cmp_nle_f32 s[58:59], s52, v{T+1}",
      f"v_cmp_nge_f32 s[60:61], s53, v{T+1}",
      f"v_cmp_nge_f32 s[62:63], s54, v{T+2}",
      f"v_mul_f32 v{T}, v{T}, v{G}",
      f"s_or_b64 s[58:59], s[58:59], s[60:61]",
      f"s_or_b64 s[58:59], s[58:59], s[62:63]")
    if force_fallback:
        a("s_mov_b64 s[58:59], -1")
    a(f"s_cmp_lg_u32 s56, 0",
      f"s_cselect_b64 s[58:59], 0, s[58:59]",
      f"s_cmp_lg_u64 s[58:59], 0",
      f"s_cbranch_scc1 {pfx}_fb")
    for k in range(12):
        a(f"v_mul_f32 v{O+k}, v{O+k}, v{T}")
    for k in range(6):
        a(f"v_cvt_pk_bf16_f32 v{O+k}, v{O+2*k}, v{O+2*k+1}")
    for k in range(6):
        a(f"v_min_u32 v{O+k}, s55, v{O+k}")
    a(f"buffer_store_dwordx4 {vr(O,4)}, v{vA16}, {sr(SWS,4)}, s50 offen sc1",
      "s_mov_b32 exec_hi, 0",
      f"buffer_store_dwordx2 {vr(O+4,2)}, v{vA8}, {sr(SWS,4)}, s51 offen sc1",
      "s_mov_b32 exec_lo, 1",
      f"ds_add_u32 v{G+2}, v{G+3}")
    a.endpgm()
    a(*slow)
    M = Q16 + 1
    a(f"{pfx}_fb:")
    a("s_mov_b32 s56, 1",
      "s_mov_b32 s57, 0",
      f"v_mov_b32 v{M}, 0xff800000")
    v_addr()
    for i in range(16):
        a(f"v_mov_b32 v{O+i}, 0")
    a(f"{pfx}_fb_pass:")
    a(f"s_mov_b32 s41, {KF}", f"s_mov_b32 s42, {KF2}", f"s_mov_b32 s43, {VF}")
    a(f"{pfx}_fb_g:")
    for j in range(8):
        load_k(j)
        load_v(j)
    a("s_add_u32 s41, s41, 4096",
      "s_add_u32 s42, s42, 2048",
      "s_add_u32 s43, s43, 2560",
      "s_waitcnt vmcnt(0)",
      "s_cmp_eq_u32 s57, 0",
      f"s_cbranch_scc0 {pfx}_fb_p2")
    for j in range(8):
        a(qk1(1, j, 0), qk2(j, 0))
        for k in range(8):
            a(f"v_max3_f32 v{M}, v{S+2*k}, v{S+2*k+1}, v{M}")
    a(f"s_branch {pfx}_fb_next")
    a(f"{pfx}_fb_p2:")
    for j in range(8):
        a(qk1(1, j, 0), qk2(j, 0))
        for k in range(16):
            a(f"v_sub_f32 v{S+k}, v{S+k}, v{M}")
        for k in range(16):
            a(e(0, k))
        for k in range(8):
            a(cv(0, k))
        a(pv(j, 0, 0), pv(j, 0, 1))
    a(f"{pfx}_fb_next:")
    a("s_nop 15",
      f"s_cmp_lt_u32 s41, {KF + 65536}",
      f"s_cbranch_scc1 {pfx}_fb_g",
      "s_cmp_eq_u32 s57, 0",
      f"s_cbranch_scc0 {pfx}_norm",
      f"v_mov_b32 v{vP}, v{M}",
      f"v_permlane32_swap_b32 v{M}, v{vP}",
      f"v_max_f32 v{M}, v{M}, v{vP}",
      "s_mov_b32 s57, 1",
      f"s_branch {pfx}_fb_pass")


def g_role(a, sR, sC, sW, SWS):
    SWD, SWO, SO = 20, 24, 28
    sK, sT, sH = 60, 61, 62
    vT, vL, vH0, vH1, vWd, vWr, vG, vU = 0, 1, 2, 3, 4, 9, 10, 11
    WF, HR, accB, accA = 12, 24, 72, 120
    HD = 6
    a.reset_vm()

    def lds_wait(name, addr_sgpr_or_const, want, sleep=1):
        a(f"K2_{name}:")
        a(f"v_mov_b32 v{vT}, {addr_sgpr_or_const}",
          f"ds_read_b32 v{vT}, v{vT}",
          f"s_sleep {sleep}",
          "s_waitcnt lgkmcnt(0)",
          f"v_readfirstlane_b32 s49, v{vT}",
          f"s_cmp_ge_u32 s49, {want}",
          f"s_cbranch_scc0 K2_{name}")

    def lds_set(addr):
        a(f"v_mov_b32 v{vT}, {addr}", f"v_mov_b32 v{vU}, 1", f"ds_write_b32 v{vT}, v{vU}")

    a(f"v_and_b32 v{vL}, 63, v0",
      f"v_lshlrev_b32 v{vT}, 2, v{vL}",
      f"v_add_u32 v{vT}, {CNT}, v{vT}",
      f"v_mov_b32 v{vU}, 0",
      f"ds_write_b32 v{vT}, v{vU}",
      f"s_sub_u32 s{sK}, s{sW}, 8",
      f"s_and_b32 s{sT}, s{sK}, 1",
      f"s_lshr_b32 s{sH}, s{sK}, 1",
      "s_waitcnt lgkmcnt(0)",
      "s_barrier")
    srd(a, SWS, 14, WS_SIZE)
    for i in range(5):
        a(f"v_add_u32 v12, {64*i}, v{vL}",
          f"v_mul_u32_u24 v13, 205, v12",
          f"v_lshrrev_b32 v13, 11, v13",
          f"v_mul_u32_u24 v14, 10, v13",
          f"v_sub_u32 v14, v12, v14",
          f"v_mul_u32_u24 v13, 1280, v13",
          f"v_lshl_add_u32 v{vWd+i}, v14, 4, v13")
    a(f"s_mul_i32 s40, s{sT}, {96*1024}",
      f"s_sub_u32 s41, {96*1024}, s40",
      f"v_lshlrev_b32 v12, 4, v{vL}",
      f"v_add_u32 v{vH0}, s40, v12",
      f"v_add_u32 v{vH1}, s41, v12",
      f"v_lshrrev_b32 v12, 5, v{vL}",
      f"v_bfe_u32 v13, v{vL}, 2, 2",
      f"v_lshl_add_u32 v12, v12, 2, v13",
      f"v_mul_u32_u24 v12, 160, v12",
      f"v_bfe_u32 v13, v{vL}, 4, 1",
      f"v_lshl_add_u32 v12, v13, 5, v12",
      f"v_and_b32 v13, 3, v{vL}",
      f"v_lshl_add_u32 v12, v13, 3, v12",
      f"s_mul_i32 s44, s{sK}, {GREG}",
      f"v_add_u32 v{vWr}, s44, v12",
      f"v_and_b32 v12, 31, v{vL}",
      f"v_lshlrev_b32 v12, 2, v12",
      f"s_lshl_b32 s46, s{sR}, 1",
      f"s_add_u32 s46, s46, s{sT}",
      f"s_lshl_b32 s40, s46, 7",
      f"s_add_u32 s40, s40, {GG}")
    a.vmem(f"buffer_load_dword v{vG}, v12, {sr(SWS,4)}, s40 offen", "g")
    a(f"s_mul_i32 s40, s{sC}, 160",
      f"s_mul_i32 s41, s{sK}, {384*1280}",
      f"s_add_u32 s41, s41, s40",
      f"s_sub_u32 s42, {1536*1280}, s41")
    srd(a, SWD, 12, "s42", off=41)
    a(f"s_mul_i32 s41, s{sK}, {160*1280}",
      f"s_add_u32 s41, s41, s40",
      f"s_sub_u32 s42, {640*1280}, s41")
    srd(a, SWO, 6, "s42", off=41)
    a(f"s_mul_i32 s41, s46, {32*1280}",
      f"s_add_u32 s41, s41, s40",
      f"s_sub_u32 s42, {2048*1280}, s41")
    srd(a, SO, 8, "s42", off=41)
    a(
      f"s_mul_i32 s43, s{sR}, 192",
      f"s_mul_i32 s40, s{sK}, 24",
      f"s_add_u32 s43, s43, s40",
      f"s_lshl_b32 s43, s43, 10",
      f"s_add_u32 s43, s43, {HF}",
      f"s_mul_i32 s50, s46, 40",
      f"s_mul_i32 s40, s{sH}, 20",
      f"s_add_u32 s50, s50, s40",
      f"s_lshl_b32 s50, s50, 10",
      f"s_add_u32 s50, s50, {OF}",
      f"s_add_u32 s51, s50, 5120",
      f"s_add_u32 s52, s50, 10240",
      f"s_add_u32 s53, s50, 15360",
      f"s_lshl_b32 s47, s{sK}, 3",
      f"s_add_u32 s47, s47, {CNT}")
    a.stamp(1)
    if "gnowait" not in OPT:
        lds_wait("gw0", "s47", 1, sleep=8)
    a.stamp(2)

    def ld_w(q):
        if q >= 17:
            return
        S, row = (SWD, q * 32) if q < 12 else (SWO, (q - 12) * 32)
        a(f"s_mov_b32 s45, {row*1280}")
        for i in range(5):
            a(f"s_add_u32 m0, s44, {((q+3)%5)*5120 + i*1024}")
            a.vmem(f"buffer_load_dwordx4 v{vWd+i}, {sr(S,4)}, s45 offen lds", ("w", q))

    def ld_h(ks):
        if ks >= 24:
            return
        if ks and ks % 4 == 0:
            a("s_add_u32 s43, s43, 4096")
        f = HR + 8 * (ks % HD)
        a.vmem(f"buffer_load_dwordx4 {vr(f,4)}, v{vH0}, {sr(SWS,4)}, s43 offen offset:{(ks%4)*1024}", ("h", ks))
        a.vmem(f"buffer_load_dwordx4 {vr(f+4,4)}, v{vH1}, {sr(SWS,4)}, s43 offen offset:{(ks%4)*1024}", ("h", ks))

    def wread(ks, ti):
        q, sb = ks // 2, ks % 2
        for rd in range(2):
            a(f"ds_read_b64_tr_b16 {vr(WF+4*ti+2*rd,2)}, v{vWr} offset:{((q+3)%5)*5120 + (8*sb+16*rd)*160 + 64*ti}")

    for q in range(3):
        ld_w(q)
        ld_h(2 * q)
        ld_h(2 * q + 1)
    ld_w(3)
    ld_w(4)
    a.wait_vm(("w", 0))
    for ti in range(3):
        wread(0, ti)
    for ks in range(24):
        a.wait_vm(("h", ks))
        if ks % 2 == 1 and ks < 23:
            a.wait_vm(("w", (ks + 1) // 2))
        if ks in (0, 8, 16):
            a.stamp(3 + ks // 8)
        f = HR + 8 * (ks % HD)
        for ti in range(3):
            a(f"s_waitcnt lgkmcnt({4 if ks < 23 else 4-2*ti})")
            for tt, acc in ((0, accA), (1, accB)):
                r = vr(acc + 16 * ti, 16)
                a(f"v_mfma_f32_32x32x16_bf16 {r}, {vr(WF+4*ti,4)}, {vr(f+4*tt,4)}, {'0' if ks == 0 else r}")
            if ks < 23:
                wread(ks + 1, ti)
            if ti == 2 and ks % 2 == 1:
                ld_w(ks // 2 + 5)
        ld_h(ks + HD)
    a.stamp(6)
    a(f"s_mul_i32 s40, s{sH}, 10240",
      f"s_add_u32 s40, s40, {XB}",
      f"v_lshlrev_b32 v{vH0}, 4, v{vL}",
      f"v_add_u32 v{vH1}, s40, v{vH0}",
      f"s_lshl_b32 s40, s{sH}, 2",
      f"s_add_u32 s41, s40, {FL2}",
      f"s_add_u32 s40, s40, {FL1}",
      f"s_cmp_eq_u32 s{sT}, 0",
      "s_cbranch_scc0 K2_x1")

    def xw():
        for n in range(10):
            a(f"ds_write_b128 v{vH1}, {vr(accB+4*n,4)} offset:{1024*n}")

    def xr():
        for n in range(10):
            a(f"ds_read_b128 {vr(HR+4*n,4)}, v{vH1} offset:{1024*n}")
    xw()
    a("s_waitcnt vmcnt(0) lgkmcnt(0)")
    lds_set("s40")
    lds_wait("x0w", "s41", 1, sleep=2)
    xr()
    a("s_branch K2_x2")
    a("K2_x1:")
    lds_wait("x1w", "s40", 1, sleep=2)
    xr()
    a("s_waitcnt lgkmcnt(0)")
    xw()
    a("s_waitcnt vmcnt(0) lgkmcnt(0)")
    lds_set("s41")
    a("K2_x2:")
    vW1, vW2, vR, vS = vWd, vWd + 1, vWd + 2, vWd + 3
    a(f"v_sub_f32 v{vG}, 1.0, v{vG}",
      f"s_mul_i32 s40, s{sT}, {GREG}",
      f"v_subrev_u32 v{vW1}, s40, v{vWr}",
      f"v_lshrrev_b32 v{vT}, 5, v{vL}",
      f"v_mul_u32_u24 v{vW2}, {36*160}, v{vT}",
      f"v_add_u32 v{vW2}, v{vW2}, v{vW1}",
      f"v_add_u32 v{vW2}, {16*160}, v{vW2}",
      f"v_lshlrev_b32 v{vR}, 3, v{vL}",
      f"v_lshl_add_u32 v{vR}, v{vT}, 8, v{vR}",
      f"v_add_u32 v{vR}, 4096, v{vR}",
      f"v_and_b32 v{vS}, 31, v{vL}",
      f"v_mul_u32_u24 v{vS}, 1280, v{vS}",
      f"v_lshl_add_u32 v{vS+1}, v{vT}, 3, v{vS}",
      f"v_lshl_add_u32 v{vS}, v{vT}, 4, v{vS}",
      f"s_mul_i32 s40, s{sK}, 5120",
      f"s_add_u32 s40, s40, {RED}",
      f"v_add_u32 v{vH1}, s40, v{vH0}",
      f"s_xor_b32 s40, s{sK}, 2",
      f"s_mul_i32 s40, s40, 5120",
      f"s_add_u32 s40, s40, {RED}",
      f"v_add_u32 v{vWr}, s40, v{vH0}",
      f"s_mov_b32 s48, {1 << 17}",
      "s_waitcnt lgkmcnt(0)")
    for i in range(40):
        a(f"v_add_f32 v{accA+i}, v{accA+i}, v{HR+i}")
    for i in range(40):
        a(f"v_mul_f32 v{accA+i}, v{accA+i}, v{vG}")
    OFR = 40
    WB = (WF, 24)
    CK = 36

    def oread(s):
        p, m = s // 5, s % 5
        out = []
        for ti in range(3):
            for rd in range(2):
                if m < 4:
                    out.append(f"ds_read_b64_tr_b16 {vr(WB[s&1]+4*ti+2*rd,2)}, v{vW1} offset:{p*12800 + (20*m+8*rd)*160 + 64*ti}")
                else:
                    out.append(f"ds_read_b64_tr_b16 {vr(WB[s&1]+4*ti+2*rd,2)}, v{vW2} offset:{p*12800 + 20*rd*160 + 64*ti}")
        return out

    def oload(p):
        f = OFR + 20 * p
        for m in range(4):
            a(f"buffer_load_dwordx4 {vr(f+4*m,4)}, v{vH0}, {sr(SWS,4)}, s{50+p} offen offset:{1024*m} sc1")
        for e in range(2):
            a(f"buffer_load_dwordx2 {vr(f+16+2*e,2)}, v{vR}, {sr(SWS,4)}, s{50+p} offen offset:{256*e} sc1")
    a(*oread(0))
    a(*oread(1))
    a.stamp(7)
    lds_wait("dn", DONE, 8, sleep=1)
    if "gprio" in OPT:
        a(f"s_setprio {OPT['gprio']}")
    if "osleep" in OPT:
        a(f"s_sleep {OPT['osleep']}")
    a.stamp(8)
    retry = []
    for p in range(4):
        oload(p)
    for p in range(4):
        f = OFR + 20 * p
        a(f"K2_o{p}:")
        a(f"s_waitcnt vmcnt({6*(3-p)})",
          f"v_max3_u32 v{CK}, v{f}, v{f+1}, v{f+2}",
          f"v_max3_u32 v{CK+1}, v{f+3}, v{f+4}, v{f+5}")
        for k in range(7):
            a(f"v_max3_u32 v{CK+(k&1)}, v{f+6+2*k}, v{f+7+2*k}, v{CK+(k&1)}")
        a(f"v_max_u32 v{CK}, v{CK}, v{CK+1}",
          f"v_cmp_eq_u32 vcc, -1, v{CK}",
          f"s_cbranch_vccnz K2_r{p}")
        a(f"K2_g{p}:")
        for m in range(5):
            s = 5 * p + m
            a(f"s_waitcnt lgkmcnt({6 if s < 19 else 0})")
            for ti in range(3):
                r = vr(accA + 16 * ti, 16)
                a(f"v_mfma_f32_32x32x16_bf16 {r}, {vr(WB[s&1]+4*ti,4)}, {vr(f+4*m,4)}, {r}")
            if s + 2 < 20:
                a(*oread(s + 2))
    a.stamp(9)
    a(f"s_cmp_eq_u32 s{sH}, 0", "s_cbranch_scc0 K2_f1")
    for kh in range(2):
        if kh:
            a("K2_f1:")
        keep = [5 * kh + n for n in range(5)]
        give = [5 * (1 - kh) + n for n in range(5)]
        for i, n in enumerate(give):
            a(f"ds_write_b128 v{vH1}, {vr(accA+4*n,4)} offset:{1024*i}")
        a("s_waitcnt lgkmcnt(0)", "s_barrier")
        for i in range(5):
            a(f"ds_read_b128 {vr(OFR+4*i,4)}, v{vWr} offset:{1024*i}")
        P = OFR + 20
        for i, n in enumerate(keep):
            a(f"s_waitcnt lgkmcnt({4-i})")
            for k in range(4):
                a(f"v_add_f32 v{OFR+4*i+k}, v{OFR+4*i+k}, v{accA+4*n+k}")
            a(f"v_cvt_pk_bf16_f32 v{P+2*n}, v{OFR+4*i}, v{OFR+4*i+1}",
              f"v_cvt_pk_bf16_f32 v{P+2*n+1}, v{OFR+4*i+2}, v{OFR+4*i+3}")
            if n in (4, 5):
                a(f"buffer_store_dwordx2 {vr(P+2*n,2)}, v{vS+1}, {sr(SO,4)}, 0 offen offset:{16*n}")
            elif n & 1:
                b = P + 2 * (n - 1)
                a(f"v_permlane32_swap_b32 v{b}, v{b+2}",
                  f"v_permlane32_swap_b32 v{b+1}, v{b+3}",
                  f"buffer_store_dwordx4 {vr(b,4)}, v{vS}, {sr(SO,4)}, 0 offen offset:{16*(n-1)}")
        a.stamp(10)
        a.endpgm()
    for p in range(4):
        a(f"K2_r{p}:")
        a("s_sub_u32 s48, s48, 1",
          f"s_cbranch_scc1 K2_x{p}e")
        for pp in range(p, 4):
            oload(pp)
        a(f"s_branch K2_o{p}")
        a(f"K2_x{p}e:")
        a("s_mov_b32 s48, 0", f"s_branch K2_g{p}")


def gen_k2():
    a = Asm()
    header(a, "k2_kernel")
    a.prof_init(1)
    sR, sC, sW = 16, 17, 18
    a("s_cmp_ge_u32 s2, 256",
      "s_cbranch_scc1 K2_done",
      "s_load_dwordx2 s[14:15], s[0:1], 96",
      "s_load_dwordx2 s[6:7], s[0:1], 32",
      "s_load_dwordx2 s[12:13], s[0:1], 64",
      "s_load_dwordx2 s[8:9], s[0:1], 80",
      "v_lshrrev_b32 v2, 6, v0",
      f"v_readfirstlane_b32 s{sW}, v2",
      "s_bfe_u32 s40, s2, 0x20001",
      "s_lshl_b32 s40, s40, 3",
      "s_lshr_b32 s41, s2, 5",
      f"s_add_u32 s{sR}, s40, s41",
      "s_and_b32 s40, s2, 1",
      "s_lshl_b32 s40, s40, 2",
      "s_bfe_u32 s41, s2, 0x20003",
      f"s_add_u32 s{sC}, s40, s41",
      f"s_cmp_ge_u32 s{sW}, 8",
      "s_cbranch_scc1 K2_g")
    att_role(a, sR, sC, sW, 32, "AT", "fallback" in OPT)
    a("K2_g:")
    g_role(a, sR, sC, sW, 32)
    a("K2_done:")
    a("s_endpgm")
    return fix(a.lines), dict(name="k2_kernel", grid=256, block=768, lds=K2_LDS, vgpr=168, accum=168)
```

```python
import sys, math, struct
from asmlib import Asm, fix, vr, sr

NAME = "gated_mix__grouped_kv_mqa__glu_gated_geglu__prompt"

QF = 0x000000
KF = 0x300000
KF2 = 0x310000
VF = 0x320000
GG = 0x340000
HF = 0x400000
OF = 0xA00000
WS_SIZE = 0x1000000

LOG2E = math.log2(math.e)
OPT = {}
for _a in sys.argv[1:]:
    if _a.startswith("--"):
        k, _, v = _a[2:].partition("=")
        OPT[k] = v if v else True


def f32(x):
    return "0x%08x" % struct.unpack("<I", struct.pack("<f", x))[0]


def header(a, name):
    a(".p2align 8")
    a(f".globl {name}")
    a(f".type {name},@function")
    a(f"{name}:")


def srd(a, d, ptr, size, off=None):
    if off is None:
        a(f"s_mov_b32 s{d}, s{ptr}", f"s_mov_b32 s{d+1}, s{ptr+1}")
    else:
        a(f"s_add_u32 s{d}, s{ptr}, s{off}", f"s_addc_u32 s{d+1}, s{ptr+1}, 0")
    a(f"s_mov_b32 s{d+2}, {size}")
    a(f"s_mov_b32 s{d+3}, 0x00020000")


XR = 0
WR = 65536
QSL = 10240
KVI = WR + 6 * QSL
GI = KVI + 25600
K1_LDS = 163840
NST = 20


def gen_k1():
    a = Asm()
    header(a, "k1_kernel")
    a.prof_init(0)
    sR, sT, sW, sSub = 16, 17, 18, 60
    SX, SA, SB, SWS, SG = 20, 24, 28, 32, 36
    a("s_cmp_ge_u32 s2, 256",
      "s_cbranch_scc1 K1_done",
      "s_load_dwordx8 s[4:11], s[0:1], 0",
      "s_load_dwordx4 s[56:59], s[0:1], 48",
      "s_load_dwordx2 s[12:13], s[0:1], 72",
      "s_load_dwordx2 s[14:15], s[0:1], 96",
      "v_lshrrev_b32 v2, 6, v0",
      "v_and_b32 v1, 63, v0",
      f"v_readfirstlane_b32 s{sW}, v2",
      "s_and_b32 s40, s2, 1",
      "s_lshl_b32 s40, s40, 3",
      "s_bfe_u32 s41, s2, 0x30003",
      f"s_add_u32 s{sR}, s40, s41",
      f"s_bfe_u32 s{sT}, s2, 0x20001",
      f"s_lshr_b32 s{sSub}, s2, 6",
      f"s_cmp_lt_u32 s{sW}, 8",
      "s_cbranch_scc1 K1_comp")
    vL = 1
    sLw = 61
    vX0, vX1, vW = 4, 5, 6
    a(f"s_sub_u32 s{sLw}, s{sW}, 8",
      f"v_lshrrev_b32 v2, 3, v{vL}",
      f"s_lshl_b32 s40, s{sLw}, 5",
      f"v_add_u32 v2, s40, v2",
      f"v_mul_u32_u24 v2, 1280, v2",
      f"v_lshrrev_b32 v3, 4, v{vL}",
      f"v_and_b32 v9, 7, v{vL}",
      f"v_xor_b32 v3, v3, v9",
      f"v_lshl_add_u32 v{vX0}, v3, 4, v2",
      f"v_xor_b32 v3, 4, v3",
      f"v_lshl_add_u32 v{vX1}, v3, 4, v2",
      f"v_add_u32 v{vX1}, {8*1280}, v{vX1}",
      f"s_mul_i32 s40, s{sR}, {128*1280}",
      f"s_lshl_b32 s43, s{sLw}, 12",
      f"s_cmp_eq_u32 s{sSub}, 3",
      "s_cbranch_scc1 K1_ldq")

    def ld_x(p, half):
        a(f"s_mov_b32 s45, {p*128 + half*16*1280}")
        for e in range(2):
            a(f"s_add_u32 m0, s43, {XR + (p%4)*16384 + (2*half+e)*1024}")
            a.vmem(f"buffer_load_dwordx4 v{vX0+e}, {sr(SX,4)}, s45 offen lds", ("x", p))

    def loader(ld_w):
        a.reset_vm()

        def group(s):
            if s >= NST:
                return
            if s == 0:
                ld_x(0, 0)
            if s % 2 == 0:
                ld_x(s // 2, 1)
                ld_w(s)
            else:
                ld_w(s)
                if s + 1 < NST:
                    ld_x((s + 1) // 2, 0)
        nxt = 0
        pre = int(OPT.get("k1pre", 3))
        while nxt < pre:
            group(nxt)
            nxt += 1
        a.stamp(1)
        for t in range(NST):
            a.wait_vm(("w", t))
            a("s_barrier")
            if t in (0, 5, 10, 15):
                a.stamp(2 + t // 5)
            n = 0
            while nxt <= t + 5 and n < 2:
                group(nxt)
                nxt += 1
                n += 1
        a.endpgm()

    a(f"v_lshrrev_b32 v2, 4, v{vL}",
      f"s_and_b32 s41, s{sLw}, 1",
      f"s_lshl_b32 s41, s41, 2",
      f"v_or_b32 v3, s41, v2",
      f"s_lshl_b32 s41, s{sLw}, 3",
      f"v_add_u32 v2, s41, v2",
      f"v_mul_u32_u24 v2, 3072, v2",
      f"v_bfe_u32 v9, v{vL}, 1, 3",
      f"v_xor_b32 v3, v3, v9",
      f"v_lshl_add_u32 v2, v3, 5, v2",
      f"v_and_b32 v3, 1, v{vL}",
      f"v_lshl_add_u32 v{vW}, v3, 4, v2",
      f"s_mul_i32 s41, s{sT}, 3",
      f"s_add_u32 s41, s41, s{sSub}",
      f"s_lshl_b32 s41, s41, 8",
      f"s_sub_u32 s42, {640*3072}, s41",
      f"s_lshl_b32 s44, s{sLw}, 11",
      "s_waitcnt lgkmcnt(0)")
    srd(a, SX, 4, 128 * 1280, off=40)
    srd(a, SA, 56, "s42", off=41)
    srd(a, SB, 58, "s42", off=41)

    def ld_wf(s):
        for i in range(2):
            a(f"s_mov_b32 s45, {s*32*3072 + i*4*3072}")
            for mat, S in ((0, SA), (1, SB)):
                a(f"s_add_u32 m0, s44, {WR + (s%6)*16384 + mat*8192 + i*1024}")
                a.vmem(f"buffer_load_dwordx4 v{vW}, {sr(S,4)}, s45 offen lds", ("w", s))
    loader(ld_wf)

    a("K1_ldq:")
    for i in range(3):
        a(f"v_add_u32 v2, {64*i}, v{vL}",
          f"v_mul_u32_u24 v3, 205, v2",
          f"v_lshrrev_b32 v3, 12, v3",
          f"v_mul_u32_u24 v9, 20, v3",
          f"v_sub_u32 v9, v2, v9",
          f"v_mul_u32_u24 v3, 1280, v3",
          f"v_lshl_add_u32 v{vW+i}, v9, 4, v3")
    a(f"s_mul_i32 s41, s{sT}, 320",
      f"s_mul_i32 s42, s{sLw}, {8*1280}",
      f"s_add_u32 s41, s41, s42",
      f"s_sub_u32 s42, {640*1280}, s41",
      f"s_mul_i32 s44, s{sLw}, 2560",
      "s_waitcnt lgkmcnt(0)")
    srd(a, SX, 4, 128 * 1280, off=40)
    srd(a, SA, 6, "s42", off=41)

    def ld_wq(s):
        a(f"s_mov_b32 s45, {s*32*1280}")
        for i in range(3):
            a(f"s_add_u32 m0, s44, {WR + (s%6)*QSL + i*1024}")
            if i == 2:
                a("s_mov_b32 exec_hi, 0")
            a.vmem(f"buffer_load_dwordx4 v{vW+i}, {sr(SA,4)}, s45 offen lds", ("w", s))
            if i == 2:
                a("s_mov_b32 exec_hi, -1")
    loader(ld_wq)

    a("K1_comp:")
    sTh, sG = 61, 62
    vXr = 4
    vWr = 6
    vF = 16
    vAcc = 80
    a(f"s_lshr_b32 s{sTh}, s{sW}, 2",
      f"s_and_b32 s{sG}, s{sW}, 3",
      f"v_and_b32 v2, 15, v{vL}",
      f"v_lshrrev_b32 v3, 4, v{vL}",
      f"v_lshrrev_b32 v10, 1, v2",
      f"v_xor_b32 v10, v10, v3",
      f"v_lshlrev_b32 v10, 4, v10",
      f"v_lshl_add_u32 v{vXr}, v2, 7, v10",
      f"s_lshl_b32 s40, s{sTh}, 13",
      f"v_add_u32 v{vXr}, s40, v{vXr}",
      f"v_xor_b32 v{vXr+1}, 64, v{vXr}",
      f"v_bfe_u32 v10, v{vL}, 2, 2",
      f"v_lshl_add_u32 v11, v3, 3, v10",
      f"v_and_b32 v12, 3, v{vL}",
      f"s_lshl_b32 s46, s{sR}, 2",
      f"s_lshl_b32 s40, s{sTh}, 1",
      f"s_add_u32 s46, s46, s40",
      f"s_cmp_eq_u32 s{sSub}, 3",
      "s_cbranch_scc1 K1_cq")

    def xreads(t):
        f = vF + 32 * (t & 1)
        return [f"ds_read_b128 {vr(f+4*j,4)}, v{vXr+(t&1)} offset:{XR + ((t//2)%4)*16384 + j*2048}" for j in range(4)]

    def mainloop(nu, wreads, post=None):
        def mf(t):
            f = vF + 32 * (t & 1)
            out = []
            for u in range(nu):
                for j in range(4):
                    acc = vr(vAcc + 16 * u + 4 * j, 4)
                    c = "0" if t == 0 else acc
                    out.append(f"v_mfma_f32_16x16x32_bf16 {acc}, {vr(f+16+4*u,4)}, {vr(f+4*j,4)}, {c}")
            return out
        for t in range(NST + 1):
            rd = []
            if t < NST:
                a("s_barrier")
                if t in (0, 5, 10, 15):
                    a.stamp(2 + t // 5)
                w = wreads(t)
                x = xreads(t)
                rd = w[:2] + x + w[2:]
            m = mf(t - 1) if t > 0 else []
            for i in range(max(len(m), len(rd))):
                if i < len(m):
                    a(m[i])
                if i < len(rd):
                    a(rd[i])
            if t < NST:
                if post:
                    post(t)
                a("s_waitcnt lgkmcnt(0)")

    a(f"v_and_b32 v13, 1, v3",
      f"v_lshl_or_b32 v13, v13, 2, v10",
      f"s_lshl_b32 s40, s{sG}, 1",
      f"v_xor_b32 v13, s40, v13",
      f"v_lshlrev_b32 v13, 5, v13",
      f"v_lshl_add_u32 v13, v12, 3, v13",
      f"v_lshl_add_u32 v13, v11, 8, v13",
      f"v_add_u32 v{vWr}, {WR}, v13",
      f"v_xor_b32 v{vWr+1}, 32, v{vWr}",
      f"v_add_u32 v{vWr+2}, {3*16384}, v{vWr}",
      f"v_add_u32 v{vWr+3}, {3*16384}, v{vWr+1}",
      f"v_lshlrev_b32 v10, 9, v3",
      f"v_lshl_add_u32 v10, v2, 4, v10",
      f"s_mul_i32 s40, s46, 96",
      f"s_mul_i32 s41, s{sT}, 3",
      f"s_add_u32 s41, s41, s{sSub}",
      f"s_lshl_b32 s41, s41, 2",
      f"s_add_u32 s41, s41, s{sG}",
      f"s_lshl_b32 s41, s41, 1",
      f"s_add_u32 s40, s40, s41",
      f"s_lshl_b32 s40, s40, 10",
      f"s_add_u32 s40, s40, {HF}",
      f"s_add_u32 s41, s40, {96*1024}",
      "s_waitcnt lgkmcnt(0)")
    srd(a, SWS, 14, WS_SIZE)

    def wreads_f(t):
        f = vF + 32 * (t & 1) + 16
        slot = t % 6
        out = []
        for u in range(4):
            for rd in range(2):
                out.append(f"ds_read_b64_tr_b16 {vr(f+4*u+2*rd,2)}, v{vWr+(u&1)+2*(slot//3)} offset:{(slot%3)*16384 + (u>>1)*8192 + rd*1024}")
        return out
    mainloop(4, wreads_f)
    a.stamp(6)
    c0 = -2.0 * math.sqrt(2.0 / math.pi) * LOG2E
    a(f"s_mov_b32 s42, {f32(c0*0.044715)}",
      f"v_mov_b32 v3, {f32(c0)}")
    T = vF
    for j in range(4):
        z = [vAcc + 4 * j + i for i in range(4)] + [vAcc + 16 + 4 * j + i for i in range(4)]
        u = [r + 32 for r in z]
        T = vF + 8 * j
        for i in range(8):
            a(f"v_mul_f32 v{T+i}, v{z[i]}, v{z[i]}")
        for i in range(8):
            a(f"v_fma_f32 v{T+i}, v{T+i}, s42, v3")
        for i in range(8):
            a(f"v_mul_f32 v{T+i}, v{T+i}, v{z[i]}")
        for i in range(8):
            a(f"v_exp_f32 v{T+i}, v{T+i}")
        for i in range(8):
            a(f"v_mul_f32 v{z[i]}, v{z[i]}, v{u[i]}")
        for i in range(8):
            a(f"v_add_f32 v{T+i}, 1.0, v{T+i}")
        for i in range(8):
            a(f"v_rcp_f32 v{T+i}, v{T+i}")
        for i in range(8):
            a(f"v_mul_f32 v{T+i}, v{z[i]}, v{T+i}")
        for i in range(4):
            a(f"v_cvt_pk_bf16_f32 v{T+i}, v{T+2*i}, v{T+2*i+1}")
        a(f"buffer_store_dwordx4 {vr(T,4)}, v10, {sr(SWS,4)}, s{40+(j>>1)} offen offset:{(j&1)*256}")
    a.stamp(7)
    a.endpgm()

    a("K1_cq:")
    a.reset_vm()
    vWq, vR0, vR1, vIn, vIw = 6, 7, 8, 9, 13
    a(f"v_lshlrev_b32 v14, 4, v{vL}",
      f"v_mov_b32 v{vF}, -1", f"v_mov_b32 v{vF+1}, -1", f"v_mov_b32 v{vF+2}, -1", f"v_mov_b32 v{vF+3}, -1",
      f"s_lshl_b32 s40, s{sR}, 2",
      f"s_add_u32 s40, s40, s{sT}",
      f"s_mul_i32 s40, s40, 40960",
      f"s_mul_i32 s41, s{sW}, 5120",
      f"s_add_u32 s40, s40, s41",
      f"s_add_u32 s40, s40, {OF}",
      f"s_add_u32 s41, s40, 4096",
      f"s_lshl_b32 s43, s{sW}, 10",
      f"s_lshl_b32 s44, s{sW}, 7",
      f"s_and_b32 s45, s{sW}, 1",
      f"s_lshl_b32 s45, s45, 7",
      f"s_add_u32 s45, s45, 1024",
      f"v_lshlrev_b32 v15, 1, v{vL}",
      "s_waitcnt lgkmcnt(0)")
    srd(a, SWS, 14, WS_SIZE)
    a(f"s_cmp_ge_u32 s{sT}, 2",
      "s_cbranch_scc1 K1_cq_nokv",
      f"s_cmp_eq_u32 s{sT}, 0",
      f"s_cselect_b32 s{SB}, s8, s10",
      f"s_cselect_b32 s{SB+1}, s9, s11",
      f"s_mov_b32 s{SB+2}, 25600",
      f"s_mov_b32 s{SB+3}, 0x00020000")
    srd(a, SG, 12, 1280)
    a(f"buffer_load_ushort v{vF+4}, v15, {sr(SG,4)}, s44 offen",
      f"buffer_load_ushort v{vF+5}, v15, {sr(SG,4)}, s45 offen")
    for i in range(3):
        a(f"s_add_u32 m0, s43, {KVI + i*8192}",
          f"s_add_u32 s47, s43, {i*8192}",
          f"buffer_load_dwordx4 v14, {sr(SB,4)}, s47 offen lds")
    a(f"s_mov_b32 m0, {KVI + 24*1024}",
      f"s_mov_b32 s47, {24*1024}",
      f"buffer_load_dwordx4 v14, {sr(SB,4)}, s47 offen lds",
      f"v_lshlrev_b32 v15, 3, v{vL}",
      f"s_lshl_b32 s44, s44, 2",
      f"s_lshl_b32 s45, s45, 2",
      f"v_add_u32 v{vF+6}, s44, v15",
      f"v_add_u32 v{vF+7}, s45, v15",
      f"v_add_u32 v{vF+6}, {GI}, v{vF+6}",
      f"v_add_u32 v{vF+7}, {GI}, v{vF+7}",
      "s_waitcnt vmcnt(4)",
      f"ds_write_b16 v{vF+6}, v{vF+4}",
      f"ds_write_b16 v{vF+7}, v{vF+5}",
      "s_waitcnt vmcnt(0)")
    a("K1_cq_nokv:")
    for i in range(5):
        a(f"buffer_store_dwordx4 {vr(vF,4)}, v14, {sr(SWS,4)}, s{40+(i>>2)} offen offset:{(i&3)*1024} sc1")
    a(
      f"v_mul_u32_u24 v13, 320, v11",
      f"v_lshrrev_b32 v15, 1, v12",
      f"v_mul_u32_u24 v15, 40, v15",
      f"v_add_u32 v{vWq}, v13, v15",
      f"v_and_b32 v15, 1, v12",
      f"v_lshl_add_u32 v{vWq}, v15, 4, v{vWq}",
      f"s_mul_i32 s42, s{sG}, 80",
      f"s_add_u32 s42, s42, {WR}",
      f"v_add_u32 v{vWq}, s42, v{vWq}",
      f"v_mul_u32_u24 v15, 40, v15",
      f"v_add3_u32 v{vR0}, v13, v15, s42",
      f"v_add_u32 v{vR0}, 32, v{vR0}",
      f"v_add_u32 v{vR1}, 1280, v{vR0}",
      f"v_mov_b32 v{vIn}, {QSL}",
      f"v_mov_b32 v{vIw}, {-5*QSL}",
      f"s_lshl_b32 s42, s{sG}, 1",
      f"v_and_b32 v15, 1, v12",
      f"v_add_u32 v15, s42, v15",
      f"v_cmp_lt_u32 vcc, 4, v15",
      f"v_lshlrev_b32 v15, 3, v15",
      f"v_add_u32 v15, {KVI}, v15",
      f"v_mov_b32 v{vF+8}, {GI}",
      f"v_cndmask_b32 v15, v15, v{vF+8}, vcc",
      f"v_mov_b32 v{vF+8}, 40",
      f"v_cndmask_b32 v{vF+8}, v{vF+8}, 8, vcc",
      f"v_mad_u32_u24 v15, v11, v{vF+8}, v15",
      f"v_lshl_add_u32 v{vF+9}, v{vF+8}, 2, v15",
      f"v_lshlrev_b32 v{vF+8}, 5, v{vF+8}",
      f"v_cmp_lt_u32 vcc, 1, v12",
      f"v_cndmask_b32 v{vR0}, v{vR0}, v15, vcc",
      f"v_cndmask_b32 v{vR1}, v{vR1}, v{vF+9}, vcc",
      f"v_cndmask_b32 v{vIn}, v{vIn}, v{vF+8}, vcc",
      f"v_cndmask_b32 v{vIw}, v{vIw}, v{vF+8}, vcc",
      "s_waitcnt lgkmcnt(0)")

    def wreads_q(t):
        f = vF + 32 * (t & 1) + 16
        slot = t % 6
        out = []
        for u in range(2):
            for rd in range(2):
                out.append(f"ds_read_b64_tr_b16 {vr(f+4*u+2*rd,2)}, v{vWq} offset:{slot*QSL + u*8 + rd*1280}")
        out.append(f"ds_read_b64_tr_b16 {vr(f+8,2)}, v{vR0}")
        out.append(f"ds_read_b64_tr_b16 {vr(f+10,2)}, v{vR1}")
        return out

    def post_q(t):
        inc = vIw if t % 6 == 5 else vIn
        a(f"v_add_u32 v{vR0}, v{vR0}, v{inc}", f"v_add_u32 v{vR1}, v{vR1}, v{inc}")
    mainloop(3, wreads_q, post_q)
    a.stamp(6)
    qs = f32(LOG2E / math.sqrt(20.0))
    a(
      f"v_lshrrev_b32 v4, 1, v3",
      f"v_mul_u32_u24 v4, 1280, v4",
      f"v_and_b32 v5, 1, v3",
      f"v_lshl_add_u32 v4, v5, 9, v4",
      f"v_lshl_add_u32 v4, v2, 4, v4",
      f"v_mul_u32_u24 v6, 1280, v3",
      f"v_lshl_add_u32 v6, v2, 3, v6",
      f"s_lshl_b32 s40, s46, 5",
      f"s_lshl_b32 s41, s{sT}, 3",
      f"s_add_u32 s40, s40, s41",
      f"s_lshl_b32 s41, s{sG}, 1",
      f"s_add_u32 s40, s40, s41",
      f"s_mul_i32 s40, s40, 1280",
      f"s_add_u32 s41, s40, {32*1280}",
      f"s_mov_b32 s42, {qs}",
      f"v_mov_b32 v7, 1.0",
      f"v_mov_b32 v8, s42",
      f"v_cmp_gt_u32 vcc, 2, v3",
      f"v_cndmask_b32 v7, v7, v8, vcc")
    for j in range(4):
        z = [vAcc + 4 * j + i for i in range(4)] + [vAcc + 16 + 4 * j + i for i in range(4)]
        T = vF + 4 * j
        for i in range(8):
            a(f"v_mul_f32 v{z[i]}, s42, v{z[i]}")
        for i in range(4):
            a(f"v_cvt_pk_bf16_f32 v{T+i}, v{z[2*i]}, v{z[2*i+1]}")
        a(f"buffer_store_dwordx4 {vr(T,4)}, v4, {sr(SWS,4)}, s{40+(j>>1)} offen offset:{(j&1)*256}")
    R = vAcc + 32
    P = vF + 16
    for i in range(16):
        a(f"v_mul_f32 v{R+i}, v7, v{R+i}")
    for i in range(8):
        a(f"v_cvt_pk_bf16_f32 v{P+i}, v{R+2*i}, v{R+2*i+1}")
    a("s_mov_b32 exec_hi, 0")
    for j in range(4):
        a(f"buffer_store_dwordx2 {vr(P+2*j,2)}, v6, {sr(SWS,4)}, s{40+(j>>1)} offen offset:{1024+(j&1)*128}")
    a(f"s_cmp_ge_u32 s{sT}, 2",
      "s_cbranch_scc1 K1_cq_end",
      f"s_cmp_eq_u32 s{sG}, 3",
      "s_cbranch_scc1 K1_cq_end",
      "s_mov_b32 exec_lo, 0",
      f"s_cmp_eq_u32 s{sG}, 2",
      "s_cselect_b32 exec_hi, 0xffff, -1",
      f"s_cmp_eq_u32 s{sT}, 1",
      "s_cbranch_scc1 K1_cq_v",
      f"s_cmp_eq_u32 s{sG}, 2",
      "s_cbranch_scc1 K1_cq_k4",
      f"v_lshlrev_b32 v4, 3, v5",
      f"v_lshl_add_u32 v4, v2, 4, v4",
      f"s_lshl_b32 s40, s46, 10",
      f"s_lshl_b32 s41, s{sG}, 9",
      f"s_add_u32 s40, s40, s41",
      f"s_add_u32 s40, s40, {KF}")
    for j in range(4):
        a(f"buffer_store_dwordx2 {vr(P+2*j,2)}, v4, {sr(SWS,4)}, s40 offen offset:{(j>>1)*1024+(j&1)*256}")
    a("s_branch K1_cq_end")
    a("K1_cq_k4:")
    a(f"v_lshlrev_b32 v4, 3, v2",
      f"s_lshl_b32 s40, s46, 8",
      f"s_add_u32 s40, s40, {KF2}")
    for j in range(4):
        a(f"buffer_store_dwordx2 {vr(P+2*j,2)}, v4, {sr(SWS,4)}, s40 offen offset:{j*128}")
    a("s_mov_b32 exec_hi, 0xffff0000",
      f"v_lshlrev_b32 v4, 2, v2",
      f"s_lshl_b32 s40, s46, 7",
      f"s_add_u32 s40, s40, {GG}")
    for j in range(4):
        a(f"v_mul_f32 v{R+4*j}, {f32(-LOG2E)}, v{R+4*j}")
    for j in range(4):
        a(f"v_exp_f32 v{R+4*j}, v{R+4*j}")
    for j in range(4):
        a(f"v_add_f32 v{R+4*j}, 1.0, v{R+4*j}")
    for j in range(4):
        a(f"v_rcp_f32 v{R+4*j}, v{R+4*j}")
    for j in range(4):
        a(f"buffer_store_dword v{R+4*j}, v4, {sr(SWS,4)}, s40 offen offset:{j*64}")
    a("s_branch K1_cq_end")
    a("K1_cq_v:")
    a(
      f"v_bfe_u32 v4, v2, 2, 1",
      f"v_mul_u32_u24 v4, 320, v4",
      f"v_lshl_add_u32 v4, v5, 6, v4",
      f"v_and_b32 v6, 3, v2",
      f"v_lshl_add_u32 v4, v6, 1, v4",
      f"v_and_b32 v6, 8, v2",
      f"v_add_u32 v4, v6, v4",
      f"s_mul_i32 s40, s46, 1280",
      f"s_lshl_b32 s41, s{sG}, 7",
      f"s_add_u32 s40, s40, s41",
      f"s_add_u32 s40, s40, {VF}")
    for j in range(4):
        for i in range(4):
            op = "buffer_store_short_d16_hi" if i & 1 else "buffer_store_short"
            a(f"{op} v{P+2*j+(i>>1)}, v4, {sr(SWS,4)}, s40 offen offset:{j*640+i*16}")
    a("K1_cq_end:")
    a.endpgm()
    a("K1_done:")
    a("s_endpgm")
    return fix(a.lines), dict(name="k1_kernel", grid=256, block=768, lds=K1_LDS, vgpr=144, accum=144)


def build(kernels):
    ref = open(f"cdna_kernels/{NAME}.s.ref").read().split("\n")
    head = [l for l in ref if l.startswith(";   offset") or l.startswith("; Kernarg")]
    out = list(head)
    for _, m in kernels:
        out.append(f"; @launch kernel={m['name']} grid=({m['grid']},1,1) block=({m['block']},1,1) lds={m['lds']}")
    out.append('.amdgcn_target "amdgcn-amd-amdhsa--gfx950"')
    out.append(".text")
    for l, _ in kernels:
        out += l
    out.append('.section .rodata,"a"')
    for _, m in kernels:
        out += [".p2align 6",
                f".amdhsa_kernel {m['name']}",
                f"  .amdhsa_next_free_vgpr {m['vgpr']}",
                "  .amdhsa_next_free_sgpr 96",
                f"  .amdhsa_accum_offset {m['accum']}",
                "  .amdhsa_group_segment_fixed_size 0",
                "  .amdhsa_kernarg_size 104",
                "  .amdhsa_user_sgpr_count 2",
                "  .amdhsa_user_sgpr_kernarg_segment_ptr 1",
                "  .amdhsa_system_sgpr_workgroup_id_x 1",
                ".end_amdhsa_kernel"]
    return "\n".join(out) + "\n"


if __name__ == "__main__":
    Asm.prof = "prof" in OPT
    outp = [x for x in sys.argv[1:] if not x.startswith("--")]
    outp = outp[0] if outp else f"cdna_kernels/{NAME}.s"
    ks = [gen_k1()]
    if "k1only" not in OPT:
        from gen3k2 import gen_k2
        ks.append(gen_k2())
    txt = build(ks)
    open(outp, "w").write(txt)
    print("wrote", outp, len(txt), "bytes")
```
